```python
import torch

def _softmax(x, axis=-1):
    return torch.softmax(x, dim=axis)
def _gelu(x):
    return torch.nn.functional.gelu(x, approximate="tanh")
def _silu(x):
    return torch.nn.functional.silu(x)
def _sigmoid(x):
    return torch.sigmoid(x)
def _layernorm(x, axis=-1, eps=1e-5):
    m = x.mean(dim=axis, keepdim=True)
    v = x.var(dim=axis, keepdim=True, unbiased=False)
    return (x - m) / torch.sqrt(v + eps)
def _scatter_add(tgt, idx, src, axis=0):
    return tgt.clone().index_add_(axis, idx, src)
def _segment_sum(src, seg, n):
    out = torch.zeros((n,) + src.shape[1:], dtype=src.dtype)
    return out.index_add_(0, seg, src)
def _pad(x, pw):
    flat = tuple(v for pair in reversed(pw) for v in pair)
    return torch.nn.functional.pad(x, flat)

kernel_name = 'interleave_layers__ssm_conv_h3__swiglu_ffn__prompt'

def setup_inputs():

    _w = (lambda a: (lambda t: t.to(torch.bfloat16) if t.is_floating_point() else t)(torch.as_tensor(a)))
    def _A_setup():
        B, S, D = 1, 2048, 512
        ks = 4
        return {
            "q": _w((lambda *s: torch.randn(*s, dtype=torch.bfloat16) * 0.05)(B, S, D)),
            "k": _w((lambda *s: torch.randn(*s, dtype=torch.bfloat16) * 1.6)(B, S, D)),
            "v": _w((lambda *s: torch.randn(*s, dtype=torch.bfloat16) * 1.6)(B, S, D)),
            "shift_k": _w((lambda *s: torch.randn(*s, dtype=torch.bfloat16) * 1.6)(D, ks) * 0.5),
            "ssm_k": _w((lambda *s: torch.randn(*s, dtype=torch.bfloat16) * 1.6)(D, S) * (1.0 / S ** 0.5)),
            "ssm_D": _w((lambda *s: torch.randn(*s, dtype=torch.bfloat16) * 1.6)(D)),
        }
    _A_in = _A_setup()

    def _B_setup():
        B, S, D, F = 1, 2048, 512, 1792
        return {
            "x": _w((lambda *s: torch.randn(*s, dtype=torch.bfloat16) * 0.05)(B, S, D)),
            "w_gate": _w((lambda *s: torch.randn(*s, dtype=torch.bfloat16) * 0.2)(D, F)),
            "w_up": _w((lambda *s: torch.randn(*s, dtype=torch.bfloat16) * 0.2)(D, F)),
            "w_down": _w((lambda *s: torch.randn(*s, dtype=torch.bfloat16) * 0.2)(F, D)),
        }
    _B_in = _B_setup()

    return {
        "A_q": _A_in["q"],
        "A_k": _A_in["k"],
        "A_v": _A_in["v"],
        "A_shift_k": _A_in["shift_k"],
        "A_ssm_k": _A_in["ssm_k"],
        "A_ssm_D": _A_in["ssm_D"],
        "B_x": _B_in["x"],
        "B_w_gate": _B_in["w_gate"],
        "B_w_up": _B_in["w_up"],
        "B_w_down": _B_in["w_down"],
    }

def reference(A_q, A_k, A_v, A_shift_k, A_ssm_k, A_ssm_D, B_x, B_w_gate, B_w_up, B_w_down):
    def _A_ref(q, k, v, shift_k, ssm_k, ssm_D):
        B, S, D = q.shape
        ks = shift_k.shape[-1]
        k_pad = _pad(k, ((0, 0), (ks - 1, 0), (0, 0)))
        k_shift = torch.zeros_like(k)
        for t in range(ks):
            k_shift = k_shift + k_pad[:, t:t + S, :] * shift_k[:, ks - 1 - t][None, None, :]
        kv = k_shift * v
        L = 2 * S
        kv_pad = _pad(kv, ((0, 0), (0, S), (0, 0)))
        kf_pad = _pad(ssm_k, ((0, 0), (0, S)))
        kv_f = (lambda x, axes=(-2,-1): torch.fft.rfft2(x.float(), dim=axes))(kv_pad[:, None, :, :], axes=(1, 2))
        kf_f = (lambda x, axes=(-2,-1): torch.fft.rfft2(x.float(), dim=axes))(kf_pad[:, None, :], axes=(1, 2))
        kf_f = (lambda x, *d: x.permute(*d))(kf_f, 1, 2, 0)
        y_f = kv_f * kf_f[None, :, :, :]
        y = (lambda x, s, axes=(-2,-1): torch.fft.irfft2(x, s=s, dim=axes).to(torch.bfloat16))(y_f, (1, L), axes=(1, 2))[:, 0, :S, :]
        y = y + kv * ssm_D[None, None, :]
        return q * y

    def _B_ref(x, w_gate, w_up, w_down):
        g = _silu(x @ w_gate)
        u = x @ w_up
        return (g * u) @ w_down

    x = A_q
    x = x + _A_ref(_layernorm(x, axis=-1), A_k, A_v, A_shift_k, A_ssm_k, A_ssm_D)
    x = x + _B_ref(_layernorm(x, axis=-1), B_w_gate, B_w_up, B_w_down)
    x = x + _A_ref(_layernorm(x, axis=-1), A_k, A_v, A_shift_k, A_ssm_k, A_ssm_D)
    x = x + _B_ref(_layernorm(x, axis=-1), B_w_gate, B_w_up, B_w_down)
    return x
```

```python
import re

REG_RE = re.compile(r'^(-?)(?:abs\()?([vas])(?:(\d+)|\[(\d+):(\d+)\])\)?$')

TRANS = ('v_exp_f32', 'v_log_f32', 'v_rcp_f32', 'v_rsq_f32', 'v_sqrt_f32', 'v_sin_f32', 'v_cos_f32')


def v(i, n=1):
    return f'v{i}' if n == 1 else f'v[{i}:{i + n - 1}]'


def a(i, n=1):
    return f'a{i}' if n == 1 else f'a[{i}:{i + n - 1}]'


def s(i, n=1):
    return f's{i}' if n == 1 else f's[{i}:{i + n - 1}]'


def regs_of(op):
    op = op.strip()
    if op in ('vcc', 'vcc_lo', 'vcc_hi'):
        return {('s', 'vcc')}
    if op in ('exec', 'exec_lo', 'exec_hi'):
        return {('s', 'exec')}
    if op == 'm0':
        return {('s', 'm0')}
    m = REG_RE.match(op)
    if not m:
        return set()
    kind = m.group(2)
    if m.group(3) is not None:
        lo = hi = int(m.group(3))
    else:
        lo, hi = int(m.group(4)), int(m.group(5))
    if kind == 'a':
        return {('v', 256 + i) for i in range(lo, hi + 1)}
    return {(kind, i) for i in range(lo, hi + 1)}


class Ins:
    __slots__ = ('text', 'op', 'cls', 'w', 'r', 'passes', 'rA', 'rC', 'wide_store', 'states', 'dpp', 'lds_dma')

    def __init__(self, text):
        self.text = text
        t = text.split(';')[0].strip()
        parts = t.split(None, 1)
        self.op = op = parts[0]
        rest = parts[1] if len(parts) > 1 else ''
        ops = [x.strip() for x in rest.split(',')] if rest else []
        mods = ''
        if ops:
            last = ops[-1].split(None, 1)
            ops[-1] = last[0]
            mods = last[1] if len(last) > 1 else ''
        R = [regs_of(x) for x in ops]
        self.w, self.r = set(), set()
        self.passes = 0
        self.rA, self.rC = set(), set()
        self.wide_store = set()
        self.states = 1
        self.dpp = '_dpp' in op or 'row_' in mods or 'quad_perm' in mods
        self.lds_dma = False
        U = lambda l: set().union(*l) if l else set()
        if op.startswith('v_mfma'):
            self.cls = 'mfma'
            self.passes = 8 if '32x32' in op else 4
            self.w = R[0]
            self.rA = R[1] | R[2]
            self.rC = R[3]
            self.r = self.rA | self.rC
        elif op.startswith('v_'):
            self.cls = 'valu'
            if op.startswith('v_cmp'):
                self.w = R[0]
                self.r = U(R[1:])
            elif op.startswith('v_permlane'):
                self.w = R[0] | R[1]
                self.r = R[0] | R[1]
            elif op.startswith(('v_add_co', 'v_sub_co', 'v_addc_co', 'v_subb_co')):
                self.w = R[0] | R[1]
                self.r = U(R[2:])
            elif op.startswith(('v_fmac', 'v_dot2c', 'v_writelane')):
                self.w = R[0]
                self.r = U(R)
            else:
                self.w = R[0]
                self.r = U(R[1:])
                if op.startswith('v_cndmask') and len(ops) == 3:
                    self.r |= {('s', 'vcc')}
                if self.dpp:
                    self.r |= R[0]
        elif op.startswith('ds_'):
            self.cls = 'ds'
            if op.startswith(('ds_read', 'ds_bpermute', 'ds_permute', 'ds_swizzle')):
                self.w = R[0]
                self.r = U(R[1:])
            else:
                self.r = U(R)
        elif op.startswith(('buffer_', 'global_')):
            self.cls = 'vmem'
            words = mods.split()
            if 'lds' in words or op.startswith('global_load_lds'):
                self.lds_dma = True
                self.r = U(R) | {('s', 'm0')}
            elif '_load' in op:
                self.w = R[0]
                self.r = U(R[1:])
            elif 'atomic' in op:
                self.r = U(R)
                if 'sc0' in words:
                    self.w = R[0]
            elif '_store' in op:
                self.r = U(R)
                if op.endswith(('x3', 'x4')):
                    self.wide_store = R[0] if op.startswith('buffer_') else R[1]
            else:
                pass
        elif op == 's_nop':
            self.cls = 'nop'
            self.states = int(ops[0], 0) + 1
        elif op.startswith(('s_load', 's_memtime', 's_memrealtime')):
            self.cls = 'smem'
            self.w = R[0]
            self.r = U(R[1:])
        elif op.startswith('s_'):
            self.cls = 'salu'
            if op.startswith(('s_cmp', 's_cbranch', 's_branch', 's_waitcnt', 's_barrier', 's_endpgm', 's_sleep', 's_setprio', 's_bitcmp')):
                self.r = U(R)
            else:
                self.w = R[0]
                self.r = U(R[1:])
                if 'saveexec' in op:
                    self.w |= {('s', 'exec')}
        else:
            raise ValueError('unknown instr ' + text)


def need_states(p, c):
    n = 0
    pv = {x for x in p.w if x[0] == 'v'}
    ps = {x for x in p.w if x[0] == 's'}
    if p.cls == 'valu':
        if c.cls == 'mfma' and pv & c.r:
            n = max(n, 2)
        if c.cls == 'valu':
            if p.op in TRANS and pv & c.r:
                n = max(n, 1)
            if c.op.startswith('v_permlane') and pv & c.r:
                n = max(n, 2)
            if c.dpp and pv & c.r:
                n = max(n, 2)
            if c.op.startswith(('v_readlane', 'v_readfirstlane')) and pv & c.r:
                n = max(n, 1)
            if ps & c.r:
                n = max(n, 4 if c.op.startswith(('v_readlane', 'v_writelane')) else 2)
        if c.cls == 'vmem' and ps & c.r:
            n = max(n, 5)
        if ('s', 'exec') in ps:
            n = max(n, 5)
    if p.cls == 'mfma':
        big = p.passes == 8
        if c.cls == 'mfma':
            if p.w & c.rA:
                n = max(n, 12 if big else 8)
            if p.w & c.rC and not (p.w == c.rC and p.passes == c.passes):
                n = max(n, 10 if big else 6)
            if p.w & c.w and not (p.w == c.rC and p.passes == c.passes):
                n = max(n, 12 if big else 8)
        elif c.cls in ('valu', 'vmem', 'ds'):
            if p.w & (c.r | c.w):
                n = max(n, 12 if big else 8)
            if c.cls == 'valu' and p.rC & c.w:
                n = max(n, 7 if big else 3)
    if p.cls == 'salu' and ('s', 'm0') in ps and c.lds_dma:
        n = max(n, 1)
    if p.wide_store and p.wide_store & c.w:
        n = max(n, 2 if c.cls in ('valu', 'mfma') else 1)
    return n


class Asm:
    def __init__(self):
        self.out = []
        self.hist = []
        self.vm = 0
        self.vm_done = 0
        self.lg = 0
        self.lg_done = 0
        self.smem_pending = False
        self.nlab = 0
        self.ninst = 0
        self.nnop = 0

    def raw(self, text):
        self.out.append(text)

    def comment(self, text):
        self.out.append('    ; ' + text)

    def label(self, name):
        self.out.append(name + ':')

    def newlabel(self, base):
        self.nlab += 1
        return f'L_{base}_{self.nlab}'

    def I(self, text):
        ins = Ins(text)
        need = 0
        dist = 0
        for p in reversed(self.hist):
            n = need_states(p, ins)
            if n > dist:
                need = max(need, n - dist)
            dist += p.states
            if dist > 20:
                break
        while need > 0:
            k = min(need, 16)
            nop = Ins(f's_nop {k - 1}')
            self.out.append('    ' + nop.text)
            self.hist.append(nop)
            self.nnop += 1
            need -= k
        self.out.append('    ' + text)
        self.hist.append(ins)
        if len(self.hist) > 40:
            del self.hist[:10]
        self.ninst += 1
        tok = None
        if ins.cls == 'vmem' and not ins.op.startswith(('buffer_inv', 'buffer_wbl2')):
            self.vm += 1
            tok = ('vm', self.vm)
        elif ins.cls == 'ds':
            self.lg += 1
            tok = ('lg', self.lg)
        elif ins.cls == 'smem':
            self.smem_pending = True
            tok = ('sm', 0)
        return tok

    def wait(self, *toks):
        vm_need = lg_need = 0
        sm = False
        for t in toks:
            if t is None:
                continue
            if isinstance(t, list):
                for x in t:
                    if x is None:
                        continue
                    if x[0] == 'vm':
                        vm_need = max(vm_need, x[1])
                    elif x[0] == 'lg':
                        lg_need = max(lg_need, x[1])
                    else:
                        sm = True
                continue
            if t[0] == 'vm':
                vm_need = max(vm_need, t[1])
            elif t[0] == 'lg':
                lg_need = max(lg_need, t[1])
            else:
                sm = True
        parts = []
        if vm_need > self.vm_done:
            n = self.vm - vm_need
            if n <= 63:
                parts.append(f'vmcnt({n})')
                self.vm_done = vm_need
            else:
                raise ValueError('vmcnt overflow')
        if sm and self.smem_pending:
            parts.append('lgkmcnt(0)')
            self.lg_done = self.lg
            self.smem_pending = False
        elif lg_need > self.lg_done:
            n = self.lg - lg_need
            if self.smem_pending:
                n = 0
                self.smem_pending = False
                lg_need = self.lg
            if n > 15:
                n = 15
                lg_need = self.lg - 15
            parts.append(f'lgkmcnt({n})')
            self.lg_done = lg_need
        if parts:
            self.I('s_waitcnt ' + ' '.join(parts))
            return True
        return False

    def wait_vm0(self):
        self.I('s_waitcnt vmcnt(0)')
        self.vm_done = self.vm

    def wait_lg0(self):
        self.I('s_waitcnt lgkmcnt(0)')
        self.lg_done = self.lg
        self.smem_pending = False

    def wait_all(self):
        self.I('s_waitcnt vmcnt(0) lgkmcnt(0)')
        self.vm_done = self.vm
        self.lg_done = self.lg
        self.smem_pending = False

    def state(self):
        return (self.vm, self.vm_done, self.lg, self.lg_done, self.smem_pending, list(self.hist))

    def restore(self, st):
        self.vm, self.vm_done, self.lg, self.lg_done, self.smem_pending, h = st
        self.hist = list(h)

    def text(self):
        return '\n'.join(self.out) + '\n'
```

```python
import sys, os
sys.path.insert(0, os.path.dirname(os.path.abspath(__file__)))
from asmlib import Asm, v, a, s

NAME = 'interleave_layers__ssm_conv_h3__swiglu_ffn__prompt'

KVT, YT = 0x0000000, 0x0200000
XF = [0x0400000, 0x0600000]
XS = [0x0800000, 0x0820000]
S2 = 0x0840000
CNT = 0x0860000
CNT_STRIDE = 129 * 256
PROF = 0x08C0000
HF = [0x0900000, 0x1000000]
WS_SIZE = 268435456
SENT = 0xBF800000

def C1(): return 0
def C2(): return 256
def C3(layer): return (2 + 8 * layer) * 256
def C4(layer): return (18 + 32 * layer) * 256

SCR = 131072
HCOFF = 48896
HCSTR = 4160
U0, USTR = SCR, 4608
FLAGW = SCR + 9216 + 64
P0BUF = SCR + 16384
RED2 = SCR + 16384
YL = SCR + 16384
CSX = SCR

sQ, sK, sV, sSH, sHK, sD, sBX, sWG, sWU, sWD, sOUT, sDBG, sWS = 4, 6, 8, 10, 12, 14, 16, 18, 20, 22, 24, 26, 28
sX, sJ = 30, 31
rK, rV, rQ, rHK, rW1, rSH, rWD, rOUT, rWS = 32, 36, 40, 44, 48, 52, 56, 60, 64
rDBG = 92
sC4K = 67
sW, sE, sCG, sRQ = 76, 77, 78, 79
sT0, sT1, sT2, sT3 = 80, 81, 82, 83
sBM0, sBOFF, sBIDX, sSPIN, sCB = 84, 85, 86, 87, 88
sBLIM = 89
sST = 90
sDC = 75
sH0 = 96
sT4, sT5 = 100, 101
sHD = 16

def c4k(i):
    return '0' if i == 0 else s(sC4K + i)

vTID, vLANE, vL16 = 0, 1, 2
vWA = 3
vBG = 7
vRW, vRR0, vRR1 = 8, 9, 10
vPROF = 11
vFXF, vFROW = 12, 13
vWD0, vWD1, vWDG = 14, 15, 16
vL8 = 17
vCI = [18, 20]
vXSL = 22
vONE = 23
vMU = 24
vCS = 28
vXRES = [40, 44]
vY = [48, 52]
vT = 56
vXA = [78, 79]
vXR = 80
vACC1, vACC2 = 144, 208
aWF = 224

LOG2E = 1.4426950408889634
import struct
def fhex(x): return '0x%08x' % struct.unpack('<I', struct.pack('<f', x))[0]


class Gen:
    def __init__(self, prof=False, stop=None, opts=None):
        self.A = Asm()
        self.prof = prof
        self.stop = stop
        self.o = dict(qa=4, qconv=10, spinmax=1 << 18)
        if opts:
            self.o.update(opts)
        self.nstamp = 0
        self.stamps = []

    def I(self, t):
        return self.A.I(t)

    def stamp(self, name):
        if not self.prof:
            return
        if name in self.stamps:
            idx = self.stamps.index(name)
        else:
            idx = len(self.stamps)
            self.stamps.append(name)
        self.I(f's_memrealtime {s(sST, 2)}')
        self.A.wait_lg0()
        self.I(f'v_writelane_b32 {v(vPROF)}, {s(sST)}, {idx}')

    def srd(self, r, ptr, size):
        I = self.I
        I(f's_mov_b32 {s(r)}, {s(ptr)}')
        I(f's_and_b32 {s(r + 1)}, {s(ptr + 1)}, 0xffff')
        I(f's_mov_b32 {s(r + 2)}, {hex(size)}')
        I(f's_mov_b32 {s(r + 3)}, 0x20000')

    def barrier(self):
        self.I('s_barrier')

    def arrive(self, soff, nl=1, voff=None):
        I = self.I
        I(f's_mov_b64 exec, {(1 << nl) - 1}')
        if voff is None:
            I(f'buffer_atomic_add {v(vONE)}, off, {s(rWS, 4)}, {s(soff)}')
        else:
            I(f'buffer_atomic_add {v(vONE)}, {v(voff)}, {s(rWS, 4)}, {s(soff)} offen')
        I('s_mov_b64 exec, -1')

    def poll(self, soff, target, srd=None, vt=None):
        A, I = self.A, self.I
        srd = rWS if srd is None else srd
        vt = vT if vt is None else vt
        L, Ld = A.newlabel('poll'), A.newlabel('polld')
        I(f's_mov_b32 {s(sSPIN)}, 0')
        A.label(L)
        I(f'buffer_load_dword {v(vt)}, off, {s(srd, 4)}, {s(soff)} sc1')
        A.wait_vm0()
        I(f'v_readfirstlane_b32 {s(sT5)}, {v(vt)}')
        I(f's_cmp_ge_u32 {s(sT5)}, {target}')
        I(f's_cbranch_scc1 {Ld}')
        I(f's_add_u32 {s(sSPIN)}, {s(sSPIN)}, 1')
        I(f's_cmp_lt_u32 {s(sSPIN)}, {hex(self.o["spinmax"])}')
        I(f's_cbranch_scc1 {L}')
        I('s_branch L_end')
        A.label(Ld)

    def check_or_poll(self, tok, vt, soff, target, srd=None):
        A, I = self.A, self.I
        Lok = A.newlabel('chk')
        A.wait(tok)
        I(f'v_readfirstlane_b32 {s(sT5)}, {v(vt)}')
        I(f's_cmp_ge_u32 {s(sT5)}, {target}')
        I(f's_cbranch_scc1 {Lok}')
        st = A.state()
        self.poll(soff, target, srd, vt)
        A.restore(st)
        A.label(Lok)

    def bg_issue(self):
        I = self.I
        I(f's_mov_b32 m0, {s(sBM0)}')
        I(f's_add_u32 {s(sBM0)}, {s(sBM0)}, 2048')
        t = I(f'buffer_load_dwordx4 {v(vBG)}, {s(rW1, 4)}, {s(sBOFF)} offen lds')
        I(f's_add_u32 {s(sBOFF)}, {s(sBOFF)}, 57344')
        I(f's_add_u32 {s(sBIDX)}, {s(sBIDX)}, 1')
        return t

    def bg_guarded(self):
        A, I = self.A, self.I
        L = A.newlabel('bgs')
        I(f's_cmp_ge_u32 {s(sBIDX)}, {s(sBLIM)}')
        I(f's_cbranch_scc1 {L}')
        vm = A.vm
        self.bg_issue()
        A.vm = vm
        A.label(L)

    def bg_finish(self):
        A, I = self.A, self.I
        L, Ld = A.newlabel('bgf'), A.newlabel('bgfd')
        A.label(L)
        I(f's_cmp_ge_u32 {s(sBIDX)}, {s(sBLIM)}')
        I(f's_cbranch_scc1 {Ld}')
        vm = A.vm
        self.bg_issue()
        A.vm = vm
        I(f's_branch {L}')
        A.label(Ld)

    def wait_with_bg(self, poller, phase, pollfn):
        A, I = self.A, self.I
        Lo, Le, Ll = A.newlabel('wo'), A.newlabel('we'), A.newlabel('wl')
        I(f's_cmp_lg_u32 {s(sW)}, {poller}')
        I(f's_cbranch_scc1 {Lo}')
        st = A.state()
        pollfn()
        I(f'v_mov_b32 {v(vT)}, {phase}')
        I(f'v_mov_b32 {v(vT + 1)}, {FLAGW}')
        I(f'ds_write_b32 {v(vT + 1)}, {v(vT)}')
        A.wait_lg0()
        I(f's_branch {Le}')
        A.restore(st)
        A.label(Lo)
        I(f'v_mov_b32 {v(vT + 1)}, {FLAGW}')
        A.label(Ll)
        I(f's_cmp_ge_u32 {s(sBIDX)}, {s(sBLIM)}')
        I(f's_cbranch_scc1 {Le}')
        vm = A.vm
        self.bg_issue()
        A.vm = vm
        I(f's_waitcnt vmcnt({self.o.get("bgdepth", 1)})')
        I(f'ds_read_b32 {v(vT)}, {v(vT + 1)}')
        A.wait_lg0()
        I(f'v_readfirstlane_b32 {s(sT5)}, {v(vT)}')
        I(f's_cmp_lt_u32 {s(sT5)}, {phase}')
        I(f's_cbranch_scc1 {Ll}')
        A.restore(st)
        A.label(Le)
        A.lg_done = A.lg
        self.barrier()

    def reduce_uu(self, r0, r1, t0):
        I = self.I
        I(f'v_permlane32_swap_b32 {v(r0)}, {v(r1)}')
        I(f'v_add_f32 {v(r0)}, {v(r0)}, {v(r1)}')
        I(f'v_mov_b32 {v(t0)}, {v(r0)}')
        I(f'v_permlane16_swap_b32 {v(r0)}, {v(t0)}')
        I(f'v_add_f32 {v(r0)}, {v(r0)}, {v(t0)}')
        I(f'v_add_f32_dpp {v(r0)}, {v(r0)}, {v(r0)} row_ror:8 row_mask:0xf bank_mask:0xf')
        I(f'v_mov_b32 {v(r1)}, {v(r0)}')
        I(f'v_permlane32_swap_b32 {v(r0)}, {v(r1)}')

    def mu_ir2(self, rS, rQ):
        I = self.I
        I(f'v_mul_f32 {v(rS)}, {fhex(1 / 512)}, {v(rS)}')
        I(f'v_mul_f32 {v(rQ)}, {fhex(1 / 512)}, {v(rQ)}')
        I(f'v_fma_f32 {v(rQ)}, -{v(rS)}, {v(rS)}, {v(rQ)}')
        I(f'v_max_f32 {v(rQ)}, 0, {v(rQ)}')
        I(f'v_add_f32 {v(rQ)}, {fhex(1e-5)}, {v(rQ)}')

    def unpack8(self, dst, src):
        I = self.I
        for i in range(4):
            I(f'v_lshlrev_b32 {v(dst + 2 * i)}, 16, {v(src + i)}')
            I(f'v_and_b32 {v(dst + 2 * i + 1)}, 0xffff0000, {v(src + i)}')

    def stats4(self, rS, rQ, src):
        I = self.I
        I(f's_mov_b32 {s(sT4)}, 0x3f803f80')
        I(f'v_dot2_f32_bf16 {v(rS)}, {v(src)}, {s(sT4)}, 0')
        I(f'v_dot2_f32_bf16 {v(rQ)}, {v(src)}, {v(src)}, 0')
        for i in range(1, 4):
            I(f'v_dot2_f32_bf16 {v(rS)}, {v(src + i)}, {s(sT4)}, {v(rS)}')
            I(f'v_dot2_f32_bf16 {v(rQ)}, {v(src + i)}, {v(src + i)}, {v(rQ)}')
        I('s_nop 2')

    def xstep(self, sig, rS, rQ, layer):
        I = self.I
        T = vT + 2
        X, Yv = T, T + 8
        assert T % 2 == 0
        self.mu_ir2(rS, rQ)
        I(f'v_rsq_f32 {v(rQ)}, {v(rQ)}')
        self.unpack8(X, vXRES[sig])
        I(f'v_mul_f32 {v(rS)}, {v(rS)}, {v(rQ)}')
        self.unpack8(Yv, vY[sig])
        assert rQ == rS + 1 and rS % 2 == 0
        T2 = T + 16
        for i in range(4):
            I(f'v_pk_fma_f32 {v(T2, 2)}, {v(X + 2 * i, 2)}, {v(rS, 2)}, {v(rS, 2)} op_sel:[0,1,0] op_sel_hi:[1,1,0] neg_lo:[0,0,1] neg_hi:[0,0,1]')
            I(f'v_pk_fma_f32 {v(X + 2 * i, 2)}, {v(T2, 2)}, {v(Yv + 2 * i, 2)}, {v(X + 2 * i, 2)}')
        for i in range(4):
            I(f'v_cvt_pk_bf16_f32 {v(vXRES[sig] + i)}, {v(X + 2 * i)}, {v(X + 2 * i + 1)}')
        self.s_tb_fin(sT0, sig)
        I(f's_lshl_b32 {s(sT1)}, {s(sT0)}, 15')
        I(f's_lshl_b32 {s(sT2)}, {s(sCG)}, 12')
        I(f's_add_u32 {s(sT1)}, {s(sT1)}, {s(sT2)}')
        I(f's_lshl_b32 {s(sT2)}, {s(sW)}, 7')
        I(f's_add_u32 {s(sT1)}, {s(sT1)}, {s(sT2)}')
        I(f's_add_u32 {s(sT1)}, {s(sT1)}, {hex(XF[layer])}')
        I(f'buffer_store_dwordx4 {v(vXRES[sig], 4)}, {v(vFXF)}, {s(rWS, 4)}, {s(sT1)} offen sc1')
        self.stats4(rS, rQ, vXRES[sig])
        self.reduce_uu(rS, rQ, T)
        I(f's_lshl_b32 {s(sT1)}, {s(sT0)}, 11')
        I(f's_lshl_b32 {s(sT2)}, {s(sCG)}, 8')
        I(f's_add_u32 {s(sT1)}, {s(sT1)}, {s(sT2)}')
        I(f's_lshl_b32 {s(sT2)}, {s(sW)}, 6')
        I(f's_add_u32 {s(sT1)}, {s(sT1)}, {s(sT2)}')
        I(f's_add_u32 {s(sT1)}, {s(sT1)}, {hex(XS[layer])}')
        I('s_mov_b64 exec, 0xff')
        I(f'buffer_store_dwordx2 {v(rS, 2)}, {v(vL8)}, {s(rWS, 4)}, {s(sT1)} offen sc1')
        I('s_mov_b64 exec, -1')

    def s_tb_fin(self, dst, sig):
        I = self.I
        I(f's_lshl_b32 {s(dst)}, {s(sX)}, 2')
        I(f's_add_u32 {s(dst)}, {s(dst)}, {s(sRQ)}')
        I(f's_lshl_b32 {s(dst)}, {s(dst)}, 1')
        if sig:
            I(f's_add_u32 {s(dst)}, {s(dst)}, 1')

    def s_tb_g1(self, dst, sig):
        I = self.I
        I(f's_lshl_b32 {s(dst)}, {s(sX)}, 2')
        I(f's_add_u32 {s(dst)}, {s(dst)}, {s(sW)}')
        I(f's_lshl_b32 {s(dst)}, {s(dst)}, 1')
        if sig:
            I(f's_add_u32 {s(dst)}, {s(dst)}, 1')

    def s2_off(self, dst, sig):
        I = self.I
        self.s_tb_fin(dst, sig)
        I(f's_lshl_b32 {s(dst)}, {s(dst)}, 2')
        I(f's_add_u32 {s(dst)}, {s(dst)}, {s(sW)}')
        I(f's_lshl_b32 {s(dst)}, {s(dst)}, 9')
        I(f's_add_u32 {s(dst)}, {s(dst)}, {hex(S2)}')

    def prologue(self):
        A, I = self.A, self.I
        I('s_cmp_ge_u32 s2, 256')
        I('s_cbranch_scc1 L_exit')
        I(f's_load_dwordx16 {s(4, 16)}, s[0:1], 0')
        I(f's_load_dwordx8 {s(20, 8)}, s[0:1], 64')
        I(f's_load_dwordx2 {s(28, 2)}, s[0:1], 96')
        I(f'v_lshrrev_b32 {v(vT)}, 6, v0')
        I(f'v_and_b32 {v(vLANE)}, 63, v0')
        I(f'v_readfirstlane_b32 {s(sW)}, {v(vT)}')
        I(f's_and_b32 {s(sX)}, s2, 7')
        I(f's_lshr_b32 {s(sJ)}, s2, 3')
        I(f's_and_b32 {s(sE)}, {s(sJ)}, 1')
        I(f's_and_b32 {s(sCG)}, {s(sJ)}, 7')
        I(f's_lshr_b32 {s(sRQ)}, {s(sJ)}, 3')
        I(f'v_lshlrev_b32 {v(vL16)}, 4, {v(vLANE)}')
        I(f'v_lshlrev_b32 {v(vL8)}, 3, {v(vLANE)}')
        I(f'v_mov_b32 {v(vONE)}, 1')
        if self.prof:
            I(f'v_mov_b32 {v(vPROF)}, 0')
        I(f's_mov_b32 {s(sC4K + 1)}, 4096')
        I(f's_mul_i32 {s(sCB)}, {s(sX)}, {CNT_STRIDE}')
        I(f's_add_u32 {s(sCB)}, {s(sCB)}, {hex(CNT)}')
        P = vXR
        I(f'v_lshrrev_b32 {v(P)}, 5, v0')
        I(f'v_and_b32 {v(P + 1)}, 31, v0')
        I(f'v_lshlrev_b32 {v(P + 2)}, 13, {v(P)}')
        I(f'v_lshl_add_u32 {v(P + 2)}, {v(P + 1)}, 2, {v(P + 2)}')
        I(f's_lshl_b32 {s(sT0)}, {s(sJ)}, 16')
        I(f's_lshl_b32 {s(sT1)}, {s(sX)}, 7')
        I(f's_add_u32 {s(sT0)}, {s(sT0)}, {s(sT1)}')
        I(f'v_add_u32 {v(P + 2)}, {s(sT0)}, {v(P + 2)}')
        I(f'v_add_u32 {v(P + 3)}, 0xfffff400, {v(P + 2)}')
        I(f's_lshl_b32 {s(sT1)}, {s(sX)}, 9')
        I(f'v_lshl_add_u32 {v(P + 4)}, {v(P + 1)}, 4, {s(sT1)}')
        A.wait_lg0()
        self.stamp('start')
        self.srd(rWS, sWS, WS_SIZE)
        self.srd(rK, sK, 2097152)
        self.srd(rV, sV, 2097152)
        Ls = A.newlabel('nolead')
        I(f's_lshl_b32 {s(sT0)}, {s(sJ)}, 2')
        I(f's_add_u32 {s(sT0)}, {s(sT0)}, {s(sW)}')
        I(f's_cmp_lg_u32 {s(sT0)}, 3')
        I(f's_cbranch_scc1 {Ls}')
        I(f'v_lshlrev_b32 {v(vT)}, 8, {v(vLANE)}')
        I(f'v_mov_b32 {v(vT + 1)}, 0')
        I(f's_add_u32 {s(sT1)}, {s(sCB)}, 16384')
        vm = A.vm
        I(f'buffer_store_dword {v(vT + 1)}, {v(vT)}, {s(rWS, 4)}, {s(sCB)} offen sc1')
        I(f'buffer_store_dword {v(vT + 1)}, {v(vT)}, {s(rWS, 4)}, {s(sT1)} offen sc1')
        A.vm = vm
        A.label(Ls)
        KD, VD, SH = vACC1, vACC1 + 12, vACC1 + 20
        self.tk = []
        for i in range(3):
            self.tk.append(I(f'buffer_load_dword {v(KD + i)}, {v(P + 3)}, {s(rK, 4)}, 0 offen offset:{1024 * i}'))
        for i in range(8):
            self.tk.append(I(f'buffer_load_dword {v(KD + 3 + i)}, {v(P + 2)}, {s(rK, 4)}, {c4k(i >> 2)} offen offset:{1024 * (i & 3)}'))
        self.srd(rSH, sSH, 4096)
        tsh = I(f'buffer_load_dwordx4 {v(SH, 4)}, {v(P + 4)}, {s(rSH, 4)}, 0 offen')
        self.tv = []
        for i in range(8):
            self.tv.append(I(f'buffer_load_dword {v(VD + i)}, {v(P + 2)}, {s(rV, 4)}, {c4k(i >> 2)} offen offset:{1024 * (i & 3)}'))
        self.tsh = tsh
        self.srd(rDBG, sDBG, 256)
        Ls = A.newlabel('nolead')
        I(f's_cmp_lg_u32 {s(sT0)}, 3')
        I(f's_cbranch_scc1 {Ls}')
        I(f's_waitcnt vmcnt({A.vm})')
        I(f's_lshl_b32 {s(sT1)}, {s(sX)}, 5')
        I('s_mov_b64 exec, 1')
        vm = A.vm
        I(f'buffer_store_dword {v(vONE)}, off, {s(rDBG, 4)}, {s(sT1)} sc1')
        A.vm = vm
        I('s_mov_b64 exec, -1')
        A.label(Ls)
        for i in range(2, 8):
            I(f's_mov_b32 {s(sC4K + i)}, {4096 * i}')
        if self.o.get('codepf', 1):
            Lc = A.newlabel('nopf')
            I(f's_cmp_lg_u32 {s(sW)}, 2')
            I(f's_cbranch_scc1 {Lc}')
            I(f's_getpc_b64 {s(sT2, 2)}')
            A.label('L_pfbase')
            I(f's_mul_i32 {s(sT1)}, {s(sJ)}, CODE_SHARE')
            I(f'v_lshlrev_b32 {v(vT)}, 7, {v(vLANE)}')
            I(f'v_min_u32 {v(vT)}, CODE_SHARE-128, {v(vT)}')
            I(f'v_add_u32 {v(vT)}, {s(sT1)}, {v(vT)}')
            I(f'v_min_u32 {v(vT)}, CODE_LEN-4, {v(vT)}')
            vm = A.vm
            I(f'global_load_dword {v(vT + 1)}, {v(vT)}, {s(sT2, 2)}')
            A.vm = vm
            A.label(Lc)
        self.srd(rHK, sHK, 2097152)
        I(f's_lshl_b32 {s(sT0)}, {s(sX)}, 5')
        I(f's_add_u32 {s(sT0)}, {s(sT0)}, {s(sJ)}')
        I(f's_lshl_b32 {s(sT1)}, {s(sT0)}, 13')
        I(f's_add_u32 {s(sT2)}, {s(sHK)}, {s(sT1)}')
        I(f's_addc_u32 {s(sT3)}, {s(sHK + 1)}, 0')
        I(f's_bitcmp1_b32 {s(sW)}, 0')
        I(f's_cselect_b32 {s(rW1)}, {s(sWU)}, {s(sWG)}')
        I(f's_cselect_b32 {s(rW1 + 1)}, {s(sWU + 1)}, {s(sWG + 1)}')
        I(f's_and_b32 {s(rW1 + 1)}, {s(rW1 + 1)}, 0xffff')
        I(f's_mov_b32 {s(rW1 + 2)}, {512 * 3584}')
        I(f's_mov_b32 {s(rW1 + 3)}, 0x20000')
        I(f's_load_dwordx2 {s(sHD, 2)}, {s(sT2, 2)}, 0')
        I(f's_load_dwordx2 {s(sHD + 2, 2)}, {s(sT2, 2)}, 4096')
        I(f's_lshl_b32 {s(sT2)}, {s(sT0)}, 2')
        I(f's_load_dword {s(sDC)}, {s(sD, 2)}, {s(sT2)}')
        I(f's_lshl_b32 {s(sT2)}, {s(sW)}, 1')
        I(f's_add_u32 {s(sT1)}, {s(sT1)}, {s(sT2)}')
        I(f's_mul_i32 {s(sT2)}, {s(sW)}, {HCSTR}')
        I(f's_add_u32 {s(sT2)}, {s(sT2)}, {HCOFF + 32}')
        for ec in range(2):
            I(f's_mov_b32 m0, {s(sT2)}')
            if ec == 0:
                I(f's_add_u32 {s(sT2)}, {s(sT2)}, 65536')
            for i in range(4):
                I(f'buffer_load_dwordx4 {v(vL16)}, {s(rHK, 4)}, {s(sT1)} offen offset:{1024 * i} lds')
            if ec == 0:
                I(f's_add_u32 {s(sT1)}, {s(sT1)}, 4096')
        I(f'v_mov_b32 {v(vT + 2)}, {hex(SENT)}')
        I(f'v_mov_b32 {v(vT + 3)}, {hex(SENT)}')
        self.s2_off(sT0, 0)
        I(f's_lshl_b32 {s(sT1)}, {s(sCG)}, 6')
        I(f's_add_u32 {s(sT0)}, {s(sT0)}, {s(sT1)}')
        I('s_mov_b64 exec, 0xff')
        I(f'buffer_store_dwordx2 {v(vT + 2, 2)}, {v(vL8)}, {s(rWS, 4)}, {s(sT0)} offen sc1')
        I(f'buffer_store_dwordx2 {v(vT + 2, 2)}, {v(vL8)}, {s(rWS, 4)}, {s(sT0)} offen offset:2048 sc1')
        I('s_mov_b64 exec, -1')
        T = vT + 4
        I(f'v_lshrrev_b32 {v(T)}, 3, {v(vLANE)}')
        I(f'v_mul_u32_u24 {v(vBG)}, 3584, {v(T)}')
        I(f'v_bfe_u32 {v(T)}, {v(vLANE)}, 1, 2')
        I(f'v_bfe_u32 {v(T + 1)}, {v(vLANE)}, 4, 1')
        I(f's_and_b32 {s(sT0)}, {s(sW)}, 1')
        I(f's_lshl_b32 {s(sT1)}, {s(sT0)}, 1')
        I(f'v_xor_b32 {v(T)}, {v(T)}, {v(T + 1)}')
        I(f'v_xor_b32 {v(T)}, {s(sT1)}, {v(T)}')
        I(f'v_lshl_add_u32 {v(vBG)}, {v(T)}, 5, {v(vBG)}')
        I(f'v_and_b32 {v(T)}, 1, {v(vLANE)}')
        I(f'v_lshl_add_u32 {v(vBG)}, {v(T)}, 4, {v(vBG)}')
        I(f's_lshr_b32 {s(sT1)}, {s(sJ)}, 1')
        I(f's_mul_i32 {s(sT1)}, {s(sT1)}, 224')
        I(f's_mul_i32 {s(sT2)}, {s(sE)}, 96')
        I(f's_add_u32 {s(sT1)}, {s(sT1)}, {s(sT2)}')
        I(f's_lshr_b32 {s(sT2)}, {s(sW)}, 1')
        I(f's_mul_i32 {s(sBOFF)}, {s(sT2)}, 28672')
        I(f's_add_u32 {s(sBOFF)}, {s(sBOFF)}, {s(sT1)}')
        I(f's_lshl_b32 {s(sBM0)}, {s(sT0)}, 16')
        I(f's_lshl_b32 {s(sT3)}, {s(sT2)}, 10')
        I(f's_add_u32 {s(sBM0)}, {s(sBM0)}, {s(sT3)}')
        I(f's_mov_b32 {s(sBIDX)}, 0')
        I(f's_sub_u32 {s(sBLIM)}, 24, {s(sT2)}')
        for _ in range(self.o['qa']):
            self.bg_issue()
        Z = vT + 10
        for i in range(4):
            I(f'v_mov_b32 {v(Z + i)}, 0')
        I(f'v_and_b32 {v(T)}, 31, {v(vLANE)}')
        I(f'v_lshlrev_b32 {v(T)}, 4, {v(T)}')
        I(f'v_add_u32 {v(T)}, {U0 + 4096}, {v(T)}')
        I(f'ds_write_b128 {v(T)}, {v(Z, 4)}')
        I(f'ds_write_b128 {v(T)}, {v(Z, 4)} offset:{USTR}')
        I(f'v_mov_b32 {v(T + 1)}, {FLAGW}')
        I(f'ds_write_b32 {v(T + 1)}, {v(Z)}')
        A.wait_lg0()
        I(f's_lshl_b32 {s(sT0)}, {s(sW)}, 4')
        I(f's_sub_u32 {s(sT0)}, 48, {s(sT0)}')
        I(f's_mul_i32 {s(sT1)}, {s(sW)}, {HCSTR}')
        I(f's_add_u32 {s(sT1)}, {s(sT1)}, {HCOFF}')
        I(f'v_mov_b32 {v(T)}, {s(sT1)}')
        I('s_mov_b64 exec, 1')
        for ec in range(2):
            I(f's_lshl_b64 {s(sHD + 2 * ec, 2)}, {s(sHD + 2 * ec, 2)}, {s(sT0)}')
            I(f's_lshl_b64 {s(sHD + 2 * ec, 2)}, {s(sHD + 2 * ec, 2)}, 16')
            if ec:
                I(f'v_add_u32 {v(T)}, 65536, {v(T)}')
            I(f'v_mov_b32 {v(Z + 4)}, {s(sHD + 2 * ec)}')
            I(f'v_mov_b32 {v(Z + 5)}, {s(sHD + 2 * ec + 1)}')
            I(f'ds_write_b128 {v(T)}, {v(Z, 4)}')
            I(f'ds_write_b128 {v(T)}, {v(Z + 2, 4)} offset:16')
            A.wait_lg0()
        I('s_mov_b64 exec, -1')

    def p0(self):
        A, I = self.A, self.I
        P = vXR
        KD, VD, SH = vACC1, vACC1 + 12, vACC1 + 20
        KP, WP, VP, R = vACC1 + 24, vACC1 + 46, vACC1 + 54, vACC1 + 70
        O = vACC1 + 88
        I(f'v_sub_u32 {v(P + 5)}, 7, {v(P)}')
        I(f'v_and_b32 {v(P + 6)}, 7, {v(P + 1)}')
        I(f'v_xor_b32 {v(P + 5)}, {v(P + 5)}, {v(P + 6)}')
        I(f'v_lshlrev_b32 {v(P + 5)}, 4, {v(P + 5)}')
        I(f'v_lshl_add_u32 {v(P + 5)}, {v(P + 1)}, 8, {v(P + 5)}')
        I(f'v_add_u32 {v(P + 5)}, {P0BUF}, {v(P + 5)}')
        I(f'v_lshrrev_b32 {v(P + 6)}, 3, v0')
        I(f'v_bfe_u32 {v(P + 7)}, v0, 4, 3')
        I(f'v_and_b32 {v(P + 8)}, 7, v0')
        I(f'v_xor_b32 {v(P + 7)}, {v(P + 7)}, {v(P + 8)}')
        I(f'v_lshlrev_b32 {v(P + 7)}, 4, {v(P + 7)}')
        I(f'v_lshl_add_u32 {v(P + 7)}, {v(P + 6)}, 7, {v(P + 7)}')
        I(f'v_add_u32 {v(P + 7)}, {P0BUF}, {v(P + 7)}')
        I(f'v_lshlrev_b32 {v(P + 8)}, 4, {v(P + 8)}')
        I(f'v_lshl_add_u32 {v(P + 8)}, {v(P + 6)}, 12, {v(P + 8)}')
        I(f's_lshl_b32 {s(sT0)}, {s(sX)}, 18')
        I(f's_lshl_b32 {s(sT1)}, {s(sJ)}, 7')
        I(f's_sub_u32 {s(sT0)}, {s(sT0)}, {s(sT1)}')
        I(f's_add_u32 {s(sT0)}, {s(sT0)}, {KVT + 3968}')
        I(f's_add_u32 {s(sT1)}, {s(sT0)}, {32 * 4096}')
        for t in range(11):
            A.wait(self.tk[t])
            I(f'v_lshlrev_b32 {v(KP + 2 * t)}, 16, {v(KD + t)}')
            I(f'v_and_b32 {v(KP + 2 * t + 1)}, 0xffff0000, {v(KD + t)}')
        A.wait(self.tsh)
        self.stamp('k_landed')
        for jj in range(2):
            I(f'v_lshlrev_b32 {v(WP + 4 * jj)}, 16, {v(SH + jj)}')
            I(f'v_lshlrev_b32 {v(WP + 4 * jj + 1)}, 16, {v(SH + 2 + jj)}')
            I(f'v_and_b32 {v(WP + 4 * jj + 2)}, 0xffff0000, {v(SH + jj)}')
            I(f'v_and_b32 {v(WP + 4 * jj + 3)}, 0xffff0000, {v(SH + 2 + jj)}')
        for t in range(8):
            I(f'v_pk_mul_f32 {v(R + 2 * t, 2)}, {v(WP + 6, 2)}, {v(KP + 2 * t, 2)}')
        for lag in (2, 1, 0):
            for t in range(8):
                I(f'v_pk_fma_f32 {v(R + 2 * t, 2)}, {v(WP + 2 * lag, 2)}, {v(KP + 2 * (t + 3 - lag), 2)}, {v(R + 2 * t, 2)}')
        for t in range(8):
            A.wait(self.tv[t])
            I(f'v_lshlrev_b32 {v(VP + 2 * t)}, 16, {v(VD + t)}')
            I(f'v_and_b32 {v(VP + 2 * t + 1)}, 0xffff0000, {v(VD + t)}')
        for t in range(8):
            I(f'v_pk_mul_f32 {v(R + 2 * t, 2)}, {v(R + 2 * t, 2)}, {v(VP + 2 * t, 2)}')
        for ch in range(2):
            for i in range(4):
                I(f'v_cvt_pk_bf16_f32 {v(O + 4 * ch + i)}, {v(R + 2 * (7 - 2 * i) + ch)}, {v(R + 2 * (6 - 2 * i) + ch)}')
            I(f'ds_write_b128 {v(P + 5)}, {v(O + 4 * ch, 4)} offset:{128 * ch}')
        I(f's_lshl_b32 {s(sT2)}, {s(sX)}, 5')
        I(f'buffer_load_dword {v(vT + 8)}, off, {s(rDBG, 4)}, {s(sT2)} sc1')
        A.wait_lg0()
        self.barrier()
        t0 = I(f'ds_read_b128 {v(O, 4)}, {v(P + 7)}')
        t1 = I(f'ds_read_b128 {v(O + 4, 4)}, {v(P + 7)} offset:4096')
        A.wait(t0)
        I(f'buffer_store_dwordx4 {v(O, 4)}, {v(P + 8)}, {s(rWS, 4)}, {s(sT0)} offen sc1')
        A.wait(t1)
        I(f'buffer_store_dwordx4 {v(O + 4, 4)}, {v(P + 8)}, {s(rWS, 4)}, {s(sT1)} offen sc1')
        CA, CBv = vXA[0], vXA[1]
        T = vT
        I(f'v_and_b32 {v(T)}, 15, {v(vLANE)}')
        I(f'v_lshrrev_b32 {v(T + 1)}, 4, {v(vLANE)}')
        I(f'v_add_u32 {v(T + 2)}, 1, {v(T)}')
        I(f'v_and_b32 {v(T + 3)}, 3, {v(T + 2)}')
        I(f'v_mul_u32_u24 {v(CA)}, {HCSTR}, {v(T + 3)}')
        I(f'v_lshrrev_b32 {v(T + 2)}, 2, {v(T + 2)}')
        I(f'v_lshl_add_u32 {v(CA)}, {v(T + 2)}, 3, {v(CA)}')
        I(f'v_lshlrev_b32 {v(T + 1)}, 4, {v(T + 1)}')
        I(f'v_sub_u32 {v(CA)}, {v(CA)}, {v(T + 1)}')
        I(f's_lshr_b32 {s(sT2)}, {s(sW)}, 1')
        I(f's_and_b32 {s(sT3)}, {s(sW)}, 1')
        I(f's_lshl_b32 {s(sT0)}, {s(sT2)}, 16')
        I(f's_lshl_b32 {s(sT1)}, {s(sT3)}, 8')
        I(f's_add_u32 {s(sT0)}, {s(sT0)}, {s(sT1)}')
        I(f's_add_u32 {s(sT0)}, {s(sT0)}, {HCOFF + 48}')
        I(f'v_add_u32 {v(CA)}, {s(sT0)}, {v(CA)}')
        I(f'v_lshl_add_u32 {v(CBv)}, {v(T)}, 5, {v(T + 1)}')
        I(f's_mul_i32 {s(sT0)}, {s(sT2)}, {USTR}')
        I(f's_add_u32 {s(sT0)}, {s(sT0)}, {s(sT1)}')
        I(f's_add_u32 {s(sT0)}, {s(sT0)}, {U0 + 528}')
        I(f'v_sub_u32 {v(CBv)}, {s(sT0)}, {v(CBv)}')
        A.wait_vm0()
        self.barrier()
        self.stamp('p0_done')

        def pf():
            I(f's_lshl_b32 {s(sT0)}, {s(sX)}, 5')
            self.check_or_poll(None, vT + 8, sT0, 1, rDBG)
            self.arrive(sCB)
            self.poll(sCB, 32)
        self.wait_with_bg(0, 1, pf)
        self.stamp('c1_seen')
        I(f's_lshl_b32 {s(sT0)}, {s(sX)}, 6')
        I(f's_lshl_b32 {s(sT1)}, {s(sJ)}, 1')
        I(f's_add_u32 {s(sT0)}, {s(sT0)}, {s(sT1)}')
        I(f's_lshl_b32 {s(sT0)}, {s(sT0)}, 12')
        I(f's_lshl_b32 {s(sT1)}, {s(sW)}, 11')
        I(f's_add_u32 {s(sT0)}, {s(sT0)}, {s(sT1)}')
        I(f's_mul_i32 {s(sT1)}, {s(sT2)}, {USTR}')
        I(f's_lshl_b32 {s(sT4)}, {s(sT3)}, 11')
        I(f's_add_u32 {s(sT1)}, {s(sT1)}, {s(sT4)}')
        I(f's_add_u32 m0, {s(sT1)}, {U0}')
        I(f's_add_u32 {s(sT4)}, {s(sT0)}, {KVT}')
        I(f'buffer_load_dwordx4 {v(vL16)}, {s(rWS, 4)}, {s(sT4)} offen sc1 lds')
        I(f'buffer_load_dwordx4 {v(vL16)}, {s(rWS, 4)}, {s(sT4)} offen offset:1024 sc1 lds')
        I(f's_add_u32 {s(sH0)}, {s(sT0)}, {YT}')
        I(f'v_and_b32 {v(T)}, 7, {v(vLANE)}')
        I(f'v_lshrrev_b32 {v(T + 1)}, 3, {v(vLANE)}')
        I(f'v_lshlrev_b32 {v(vFXF)}, 4, {v(T)}')
        I(f'v_lshl_add_u32 {v(vFXF)}, {v(T + 1)}, 9, {v(vFXF)}')
        I(f'v_lshlrev_b32 {v(vFROW)}, 10, {v(T)}')
        I(f'v_lshl_add_u32 {v(vFROW)}, {v(T + 1)}, 4, {v(vFROW)}')
        self.srd(rQ, sQ, 2097152)
        self.srd(rWD, sWD, 1792 * 1024)
        self.srd(rOUT, sOUT, 2097152)
        A.wait_vm0()
        self.barrier()
        self.stamp('u_landed')

    def conv(self):
        A, I = self.A, self.I
        CA, CBv = vXA[0], vXA[1]
        ACC = vACC1
        QR = vXR
        fill = []
        self.tq = []

        def qaddr(sig):
            def f():
                self.s_tb_fin(sT0, sig)
                I(f's_lshl_b32 {s(sT0)}, {s(sT0)}, 2')
                I(f's_add_u32 {s(sT0)}, {s(sT0)}, {s(sW)}')
                I(f's_lshl_b32 {s(sT0)}, {s(sT0)}, 13')
            return f

        def qload(sig, i):
            def f():
                I(f's_add_u32 {s(sT1)}, {s(sCG)}, {i}')
                I(f's_and_b32 {s(sT1)}, {s(sT1)}, 7')
                I(f's_lshl_b32 {s(sT1)}, {s(sT1)}, 7')
                I(f's_add_u32 {s(sT1)}, {s(sT1)}, {s(sT0)}')
                self.tq.append(I(f'buffer_load_dwordx4 {v(QR + 32 * sig + 4 * i, 4)}, {v(vFROW)}, {s(rQ, 4)}, {s(sT1)} offen'))
            return f
        for sig in range(2):
            fill.append(qaddr(sig))
            for i in range(8):
                fill.append(qload(sig, i))
        for _ in range(self.o['qconv']):
            fill.append(self.bg_guarded)

        def frag_reads(rho):
            buf = (rho & 1) * 64
            out = []
            for x in range(8):
                out.append(('B', x, [f'ds_read_b128 {a(buf + 32 + 4 * x, 4)}, {v(CBv)} offset:{512 * (7 - x) + 64 * rho}']))
                out.append(('A', x, [f'ds_read_b64 {a(buf + 4 * x, 2)}, {v(CA)} offset:{64 * rho + 512 * x}',
                                     f'ds_read_b64 {a(buf + 4 * x + 2, 2)}, {v(CA)} offset:{64 * rho + 512 * x + 8}']))
            return out
        tok = {}

        def emit_read(rho, item):
            kind, x, ins = item
            for t in ins:
                tok[(rho, kind, x)] = I(t)
        for item in frag_reads(0):
            emit_read(0, item)
        order = sorted([(i, eb) for i in range(8) for eb in range(8 - i)], key=lambda p: (max(p), p))
        started = set()
        nm = 0
        for rho in range(4):
            buf = (rho & 1) * 64
            nxt = frag_reads(rho + 1) if rho < 3 else []
            for (i, eb) in order:
                A.wait(tok[(rho, 'A', i)], tok[(rho, 'B', eb)])
                d = ACC + 4 * (i + eb)
                c = v(d, 4) if (i + eb) in started else '0'
                started.add(i + eb)
                I(f'v_mfma_f32_16x16x32_bf16 {v(d, 4)}, {a(buf + 4 * i, 4)}, {a(buf + 32 + 4 * eb, 4)}, {c}')
                nm += 1
                k = nm % 36
                if nxt and k >= 2 and k % 2 == 0:
                    emit_read(rho + 1, nxt.pop(0))
                elif fill and nm % 4 == 1:
                    fill.pop(0)()
            while nxt:
                emit_read(rho + 1, nxt.pop(0))
        while fill:
            fill.pop(0)()
        self.stamp('conv_mfma')
        T = vT
        O = vACC1 + 32
        I(f's_lshl_b32 {s(sT0)}, {s(sW)}, 12')
        I(f's_add_u32 {s(sT0)}, {s(sT0)}, {RED2}')
        I(f'v_add_u32 {v(T)}, {s(sT0)}, {v(vL16)}')
        I(f'v_xor_b32 {v(T + 1)}, 4096, {v(T)}')
        I(f'v_and_b32 {v(T + 2)}, 15, {v(vLANE)}')
        I(f'v_lshrrev_b32 {v(T + 3)}, 4, {v(vLANE)}')
        I(f'v_lshlrev_b32 {v(T + 3)}, 3, {v(T + 3)}')
        I(f'v_lshl_add_u32 {v(T + 2)}, {v(T + 2)}, 5, {v(T + 3)}')
        I(f's_lshr_b32 {s(sT2)}, {s(sW)}, 1')
        I(f's_and_b32 {s(sT3)}, {s(sW)}, 1')
        I(f's_mul_i32 {s(sT0)}, {s(sT2)}, {USTR}')
        I(f's_lshl_b32 {s(sT1)}, {s(sT3)}, 11')
        I(f's_sub_u32 {s(sT0)}, {s(sT0)}, {s(sT1)}')
        I(f's_add_u32 {s(sT0)}, {s(sT0)}, {U0 + 4088 - 1536}')
        I(f'v_sub_u32 {v(T + 3)}, {s(sT0)}, {v(T + 2)}')
        UU = vACC1 + 48
        tu = [I(f'ds_read_b64 {v(UU + 2 * k, 2)}, {v(T + 3)} offset:{512 * (3 - k)}') for k in range(4)]
        I(f's_lshl_b32 {s(sT4)}, {s(sDC)}, 16')
        I(f's_and_b32 {s(sT5)}, {s(sDC)}, 0xffff0000')
        I(f's_cmp_eq_u32 {s(sT2)}, 0')
        I(f's_cselect_b32 {s(sT4)}, {s(sT4)}, {s(sT5)}')
        L1, L2 = A.newlabel('hf'), A.newlabel('hfd')
        I(f's_cmp_eq_u32 {s(sT3)}, 1')
        I(f's_cbranch_scc1 {L1}')
        st = A.state()
        for hf in range(2):
            if hf:
                A.restore(st)
                A.label(L1)
            for k in range(4):
                I(f'ds_write_b128 {v(T)}, {v(ACC + 16 * (1 - hf) + 4 * k, 4)} offset:{1024 * k}')
            A.wait_lg0()
            self.barrier()
            tr = [I(f'ds_read_b128 {v(O + 4 * k, 4)}, {v(T + 1)} offset:{1024 * k}') for k in range(4)]
            for k in range(4):
                A.wait(tr[k])
                for x in range(2):
                    I(f'v_pk_add_f32 {v(O + 4 * k + 2 * x, 2)}, {v(O + 4 * k + 2 * x, 2)}, {v(ACC + 16 * hf + 4 * k + 2 * x, 2)}')
            if not hf:
                I(f's_branch {L2}')
        A.label(L2)
        for k in range(4):
            d0, d1 = UU + 2 * k, UU + 2 * k + 1
            I(f'v_and_b32 {v(T + 4)}, 0xffff0000, {v(d1)}')
            I(f'v_lshlrev_b32 {v(T + 5)}, 16, {v(d1)}')
            I(f'v_and_b32 {v(T + 6)}, 0xffff0000, {v(d0)}')
            I(f'v_lshlrev_b32 {v(T + 7)}, 16, {v(d0)}')
            for r in range(4):
                I(f'v_fmac_f32 {v(O + 4 * k + r)}, {s(sT4)}, {v(T + 4 + r)}')
            I(f'v_cvt_pk_bf16_f32 {v(O + 4 * k)}, {v(O + 4 * k)}, {v(O + 4 * k + 1)}')
            I(f'v_cvt_pk_bf16_f32 {v(O + 4 * k + 1)}, {v(O + 4 * k + 2)}, {v(O + 4 * k + 3)}')
            I(f'buffer_store_dwordx2 {v(O + 4 * k, 2)}, {v(T + 2)}, {s(rWS, 4)}, {s(sH0)} offen offset:{512 * k} sc1')
        I(f'v_and_b32 {v(T + 8)}, 7, {v(vLANE)}')
        I(f'v_lshlrev_b32 {v(T + 8)}, 5, {v(T + 8)}')
        I(f'buffer_load_dword {v(T + 9)}, {v(T + 8)}, {s(rDBG, 4)}, 0 offen sc1')
        I(f's_mov_b32 {s(sBLIM)}, 32')
        A.wait_vm0()
        self.barrier()
        self.stamp('y_stored')
        Ln = A.newlabel('noarr')
        I(f's_cmp_lg_u32 {s(sW)}, 1')
        I(f's_cbranch_scc1 {Ln}')
        I(f's_add_u32 {s(sT0)}, {s(sCB)}, {C2()}')
        vm = A.vm
        self.arrive(sT0)
        A.vm = vm
        A.label(Ln)
        I(f's_mov_b32 {s(sT4)}, 0x3f803f80')
        for sig in range(2):
            rS, rQ_ = vCI[sig], vCI[sig] + 1
            S1, Q1 = T + 10, T + 11
            for i in range(32):
                src = QR + 32 * sig + i
                dS, dQ = (rS, rQ_) if i % 2 == 0 else (S1, Q1)
                cS, cQ = (v(dS), v(dQ)) if i >= 2 else ('0', '0')
                I(f'v_dot2_f32_bf16 {v(dS)}, {v(src)}, {s(sT4)}, {cS}')
                I(f'v_dot2_f32_bf16 {v(dQ)}, {v(src)}, {v(src)}, {cQ}')
                if i % 16 == 15:
                    self.bg_guarded()
            I('s_nop 2')
            I(f'v_add_f32 {v(rS)}, {v(rS)}, {v(S1)}')
            I(f'v_add_f32 {v(rQ_)}, {v(rQ_)}, {v(Q1)}')
            self.reduce_uu(rS, rQ_, S1)
            for i in range(4):
                I(f'v_mov_b32 {v(vXRES[sig] + i)}, {v(QR + 32 * sig + i)}')
        YG0, YG1, YR = vXR, vXR + 1, vXR + 2
        I(f'v_lshrrev_b32 {v(T)}, 3, {v(vLANE)}')
        I(f'v_and_b32 {v(T + 1)}, 7, {v(vLANE)}')
        I(f'v_bfe_u32 {v(T + 2)}, {v(vLANE)}, 4, 1')
        I(f'v_xor_b32 {v(T + 1)}, {v(T + 1)}, {v(T + 2)}')
        I(f's_and_b32 {s(sT0)}, {s(sW)}, 1')
        I(f's_lshl_b32 {s(sT0)}, {s(sT0)}, 2')
        I(f'v_xor_b32 {v(T + 1)}, {s(sT0)}, {v(T + 1)}')
        I(f'v_lshlrev_b32 {v(T + 1)}, 4, {v(T + 1)}')
        I(f'v_lshl_add_u32 {v(YG0)}, {v(T)}, 12, {v(T + 1)}')
        I(f'v_xor_b32 {v(YG1)}, 32, {v(YG0)}')
        I(f'v_lshrrev_b32 {v(T)}, 4, {v(vLANE)}')
        I(f'v_bfe_u32 {v(T + 1)}, {v(vLANE)}, 1, 1')
        I(f'v_lshl_add_u32 {v(T)}, {v(T)}, 1, {v(T + 1)}')
        I(f'v_bfe_u32 {v(T + 1)}, {v(vLANE)}, 2, 2')
        I(f'v_lshl_add_u32 {v(T + 2)}, {v(T)}, 3, {v(T + 1)}')
        I(f'v_and_b32 {v(T)}, 3, {v(T)}')
        I(f'v_lshrrev_b32 {v(T + 1)}, 1, {v(T + 1)}')
        I(f'v_lshl_add_u32 {v(T)}, {v(T)}, 1, {v(T + 1)}')
        I(f'v_xor_b32 {v(T)}, {s(sW)}, {v(T)}')
        I(f'v_lshlrev_b32 {v(T)}, 4, {v(T)}')
        I(f'v_lshl_add_u32 {v(YR)}, {v(T + 2)}, 7, {v(T)}')
        I(f'v_and_b32 {v(T)}, 1, {v(vLANE)}')
        I(f'v_lshl_add_u32 {v(YR)}, {v(T)}, 3, {v(YR)}')
        I(f'v_add_u32 {v(YR)}, {YL}, {v(YR)}')
        I(f'v_xor_b32 {v(YR + 1)}, 64, {v(YR)}')

        def pf():
            Lok, Lp = A.newlabel('ini'), A.newlabel('inip')
            I(f's_mov_b32 {s(sSPIN)}, 0')
            A.label(Lp)
            I(f'v_cmp_ne_u32 vcc, 0, {v(T + 9)}')
            I('s_nop 1')
            I('s_cmp_eq_u64 vcc, exec')
            I(f's_cbranch_scc1 {Lok}')
            I(f'buffer_load_dword {v(T + 9)}, {v(T + 8)}, {s(rDBG, 4)}, 0 offen sc1')
            A.wait_vm0()
            I(f's_add_u32 {s(sSPIN)}, {s(sSPIN)}, 1')
            I(f's_cmp_lt_u32 {s(sSPIN)}, {hex(self.o["spinmax"])}')
            I(f's_cbranch_scc1 {Lp}')
            I('s_branch L_end')
            A.label(Lok)
            I(f's_mul_i32 {s(sT0)}, {s(sCG)}, {CNT_STRIDE}')
            I(f's_add_u32 {s(sT0)}, {s(sT0)}, {hex(CNT + C2())}')
            self.poll(sT0, 32)
        self.wait_with_bg(1, 2, pf)
        self.stamp('c2_seen')
        I(f's_lshl_b32 {s(sT0)}, {s(sCG)}, 2')
        I(f's_add_u32 {s(sT0)}, {s(sT0)}, {s(sW)}')
        I(f's_lshl_b32 {s(sT0)}, {s(sT0)}, 16')
        I(f's_lshl_b32 {s(sT1)}, {s(sX)}, 2')
        I(f's_add_u32 {s(sT1)}, {s(sT1)}, {s(sRQ)}')
        I(f's_lshl_b32 {s(sT1)}, {s(sT1)}, 7')
        I(f's_add_u32 {s(sT0)}, {s(sT0)}, {s(sT1)}')
        I(f's_add_u32 {s(sT0)}, {s(sT0)}, {YT}')
        I(f's_lshl_b32 {s(sT1)}, {s(sW)}, 11')
        I(f's_add_u32 m0, {s(sT1)}, {YL}')
        I(f's_add_u32 {s(sT2)}, {s(sT0)}, {32768 - 1024}')
        I(f'buffer_load_dwordx4 {v(YG0)}, {s(rWS, 4)}, {s(sT0)} offen sc1 lds')
        I(f'buffer_load_dwordx4 {v(YG1)}, {s(rWS, 4)}, {s(sT2)} offen offset:1024 sc1 lds')
        A.wait_vm0()
        self.barrier()
        ty = []
        for sig in range(2):
            for jj in range(2):
                ty.append(I(f'ds_read_b64_tr_b16 {v(vY[sig] + 2 * jj, 2)}, {v(YR + sig)} offset:{512 * jj}'))
        A.wait(ty)
        self.stamp('y_landed')
        for sig in range(2):
            self.xstep(sig, vCI[sig], vCI[sig] + 1, 0)
        A.wait_vm0()
        self.barrier()
        Ln = A.newlabel('noarr')
        I(f's_cmp_lg_u32 {s(sW)}, 0')
        I(f's_cbranch_scc1 {Ln}')
        I(f's_lshl_b32 {s(sT0)}, {s(sRQ)}, 9')
        I(f's_add_u32 {s(sT0)}, {s(sT0)}, {s(sCB)}')
        I(f's_add_u32 {s(sT0)}, {s(sT0)}, {C3(0)}')
        I(f'v_lshlrev_b32 {v(vT)}, 8, {v(vLANE)}')
        vm = A.vm
        self.arrive(sT0, 2, vT)
        A.vm = vm
        A.label(Ln)
        self.stamp('x1_pub')

    def ffn_setup(self):
        A, I = self.A, self.I
        T = vT
        self.bg_finish()
        I(f'v_lshrrev_b32 {v(T)}, 5, {v(vLANE)}')
        I(f'v_bfe_u32 {v(T + 1)}, {v(vLANE)}, 4, 1')
        I(f'v_bfe_u32 {v(T + 2)}, {v(vLANE)}, 2, 2')
        I(f'v_lshl_add_u32 {v(T + 3)}, {v(T)}, 3, {v(T + 2)}')
        I(f'v_lshlrev_b32 {v(T + 3)}, 7, {v(T + 3)}')
        I(f'v_lshrrev_b32 {v(T + 2)}, 1, {v(T + 2)}')
        I(f'v_and_b32 {v(T + 4)}, 1, {v(vLANE)}')
        I(f'v_bfe_u32 {v(T + 5)}, {v(vLANE)}, 1, 1')
        I(f'v_lshl_add_u32 {v(T + 4)}, {v(T + 4)}, 1, {v(T + 5)}')
        I(f'v_lshl_add_u32 {v(T + 5)}, {v(T + 1)}, 16, {v(T + 3)}')
        I(f'v_lshl_add_u32 {v(T + 5)}, {v(T + 4)}, 3, {v(T + 5)}')
        I(f'v_lshl_add_u32 {v(T + 6)}, {v(T + 1)}, 1, {v(T + 2)}')
        for b in range(4):
            I(f's_add_u32 {s(sT0)}, {s(sE)}, {b}')
            I(f's_and_b32 {s(sT0)}, {s(sT0)}, 3')
            I(f'v_xor_b32 {v(T + 7)}, {s(sT0)}, {v(T + 6)}')
            I(f'v_lshl_add_u32 {v(vWA + b)}, {v(T + 7)}, 5, {v(T + 5)}')
        I(f'v_and_b32 {v(T + 4)}, 3, {v(vLANE)}')
        I(f'v_lshl_add_u32 {v(T + 3)}, {v(T + 4)}, 3, {v(T + 3)}')
        I(f'v_lshl_add_u32 {v(T + 3)}, {v(T + 1)}, 5, {v(T + 3)}')
        I(f'v_lshl_add_u32 {v(T + 3)}, {v(T + 2)}, 6, {v(T + 3)}')
        I(f's_lshl_b32 {s(sT0)}, {s(sW)}, 13')
        I(f's_add_u32 {s(sT0)}, {s(sT0)}, {SCR}')
        I(f'v_add_u32 {v(vWD0)}, {s(sT0)}, {v(T + 3)}')
        I(f'v_xor_b32 {v(vWD1)}, 64, {v(vWD0)}')
        I(f'v_lshrrev_b32 {v(T)}, 3, {v(vLANE)}')
        I(f'v_bfe_u32 {v(T + 2)}, {v(vLANE)}, 2, 1')
        I(f'v_xor_b32 {v(T + 2)}, {v(T + 2)}, {v(T + 1)}')
        I(f'v_lshlrev_b32 {v(vWDG)}, 10, {v(T)}')
        I(f'v_lshl_add_u32 {v(vWDG)}, {v(T + 2)}, 6, {v(vWDG)}')
        I(f'v_lshl_add_u32 {v(vWDG)}, {v(T + 4)}, 4, {v(vWDG)}')
        I(f'v_and_b32 {v(T)}, 31, {v(vLANE)}')
        I(f'v_lshrrev_b32 {v(T + 1)}, 5, {v(vLANE)}')
        I(f'v_and_b32 {v(T + 2)}, 7, {v(vLANE)}')
        I(f'v_and_b32 {v(T + 3)}, 4, {v(vLANE)}')
        I(f'v_lshl_add_u32 {v(T + 2)}, {v(T + 3)}, 1, {v(T + 2)}')
        I(f'v_xor_b32 {v(T + 3)}, {v(T + 1)}, {v(T + 2)}')
        I(f'v_lshlrev_b32 {v(T + 3)}, 4, {v(T + 3)}')
        I(f'v_lshl_add_u32 {v(T + 3)}, {v(T)}, 8, {v(T + 3)}')
        I(f'v_add_u32 {v(vRW)}, {s(sT0)}, {v(T + 3)}')
        I(f'v_lshlrev_b32 {v(vXSL)}, 3, {v(T)}')
        I(f'v_lshl_add_u32 {v(vXSL)}, {v(T + 1)}, 10, {v(vXSL)}')
        I(f'v_lshrrev_b32 {v(T)}, 3, {v(vLANE)}')
        I(f'v_lshlrev_b32 {v(T)}, 1, {v(T)}')
        I(f'v_xor_b32 {v(T)}, {v(T)}, {v(T + 2)}')
        I(f'v_lshlrev_b32 {v(T)}, 4, {v(T)}')
        I(f'v_and_b32 {v(T + 1)}, 7, {v(vLANE)}')
        I(f'v_lshl_add_u32 {v(T)}, {v(T + 1)}, 8, {v(T)}')
        I(f's_lshl_b32 {s(sT1)}, {s(sW)}, 11')
        I(f's_add_u32 {s(sT1)}, {s(sT1)}, {SCR}')
        I(f'v_add_u32 {v(vRR0)}, {s(sT1)}, {v(T)}')
        I(f'v_xor_b32 {v(vRR1)}, 16, {v(vRR0)}')
        I(f's_cmp_eq_u32 {s(sW)}, 1')
        I(f's_cselect_b64 vcc, -1, 0')
        I(f'v_cndmask_b32 {v(T)}, {v(vWA)}, {v(vWA + 1)}, vcc')
        I(f's_cmp_eq_u32 {s(sW)}, 2')
        I(f's_cselect_b64 vcc, -1, 0')
        I(f'v_cndmask_b32 {v(T)}, {v(T)}, {v(vWA + 2)}, vcc')
        I(f's_cmp_eq_u32 {s(sW)}, 3')
        I(f's_cselect_b64 vcc, -1, 0')
        I(f'v_cndmask_b32 {v(T)}, {v(T)}, {v(vWA + 3)}, vcc')
        for i in range(4):
            I(f'v_mov_b32 {v(vMU + i)}, 0x3f803f80')
        A.wait_vm0()
        self.barrier()
        self.stamp('w1_landed')
        NB = 8
        tk = {}

        def rd(st):
            for jj in range(2):
                tk[st] = I(f'ds_read_b64_tr_b16 {a(aWF + 4 * (st % NB) + 2 * jj, 2)}, {v(T)} offset:{2048 * st + 512 * jj}')
        for st in range(NB - 1):
            rd(st)
        for st in range(32):
            A.wait(tk[st])
            c = v(vACC1, 16) if st else '0'
            I(f'v_mfma_f32_32x32x16_bf16 {v(vACC1, 16)}, {v(vMU, 4)}, {a(aWF + 4 * (st % NB), 4)}, {c}')
            if st + NB - 1 < 32:
                rd(st + NB - 1)
        I(f's_lshl_b32 {s(sT0)}, {s(sW)}, 9')
        I(f's_add_u32 {s(sT0)}, {s(sT0)}, {CSX}')
        I(f'v_add_u32 {v(T + 1)}, {s(sT0)}, {v(vL8)}')
        I(f'v_add_u32 {v(T + 6)}, {CSX}, {v(vL8)}')
        I(f'v_sub_f32 {v(T + 4)}, 0, {v(vACC1)}')
        I(f'v_cvt_pk_bf16_f32 {v(T + 2)}, {v(T + 4)}, {v(T + 4)}')
        I(f'v_and_b32 {v(T + 5)}, 0xffff0000, {v(T + 2)}')
        I(f'v_sub_f32 {v(T + 4)}, {v(T + 4)}, {v(T + 5)}')
        I(f'v_cvt_pk_bf16_f32 {v(T + 3)}, {v(T + 4)}, 0')
        I(f'ds_write_b64 {v(T + 1)}, {v(T + 2, 2)}')
        for i in (2, 3, 8, 9):
            I(f'v_mov_b32 {v(vCS + i)}, 0')
        A.wait_lg0()
        self.barrier()
        for b, off in enumerate((0, 4, 6, 10)):
            I(f'ds_read_b64 {v(vCS + off, 2)}, {v(T + 6)} offset:{512 * b}')
        A.wait_lg0()
        self.barrier()
        self.stamp('cs_done')

    def c3_off(self, dst, layer, sig):
        I = self.I
        I(f's_lshl_b32 {s(dst)}, {s(sW)}, 9')
        I(f's_add_u32 {s(dst)}, {s(dst)}, {s(sCB)}')
        I(f's_add_u32 {s(dst)}, {s(dst)}, {C3(layer) + 256 * sig}')

    def x_addr(self, layer, sig):
        I = self.I
        self.s_tb_g1(sT0, sig)
        I(f's_lshl_b32 {s(sT1)}, {s(sT0)}, 15')
        I(f's_add_u32 {s(sT1)}, {s(sT1)}, {hex(XF[layer])}')
        I(f'v_add_u32 {v(vXA[sig])}, {s(sT1)}, {v(vL16)}')
        I(f's_lshl_b32 {s(sT1)}, {s(sT0)}, 11')
        I(f's_add_u32 {s(sT1)}, {s(sT1)}, {hex(XS[layer])}')

    def xs_loads(self, ST):
        return [self.I(f'buffer_load_dwordx2 {v(ST + 2 * i, 2)}, {v(vXSL)}, {s(rWS, 4)}, {s(sT1)} offen offset:{256 * i} sc1') for i in range(4)]

    def x_load(self, sig, st):
        return self.I(f'buffer_load_dwordx4 {v(vXR + 4 * (st % 16), 4)}, {v(vXA[sig])}, {s(rWS, 4)}, {c4k(st >> 2)} offen offset:{1024 * (st & 3)} sc1')

    def stats_fill(self, sig, ST, toks):
        A, I = self.A, self.I
        c, ir2 = vCI[sig], vCI[sig] + 1
        L = []
        first = [True]

        def op(t, w=False):
            def f():
                if w:
                    A.wait(toks)
                I(t)
            L.append(f)
        op(f'v_add_f32 {v(ST)}, {v(ST)}, {v(ST + 2)}', True)
        op(f'v_add_f32 {v(ST + 1)}, {v(ST + 1)}, {v(ST + 3)}')
        op(f'v_add_f32 {v(ST + 4)}, {v(ST + 4)}, {v(ST + 6)}')
        op(f'v_add_f32 {v(ST + 5)}, {v(ST + 5)}, {v(ST + 7)}')
        op(f'v_add_f32 {v(ST)}, {v(ST)}, {v(ST + 4)}')
        op(f'v_add_f32 {v(ST + 1)}, {v(ST + 1)}, {v(ST + 5)}')
        op(f'v_mov_b32 {v(vMU + 1)}, 0')
        op(f'v_mov_b32 {v(vMU + 3)}, 0')
        op(f'v_permlane32_swap_b32 {v(ST)}, {v(ST + 1)}')
        op(f'v_add_f32 {v(ST)}, {v(ST)}, {v(ST + 1)}')
        op(f'v_mul_f32 {v(ST)}, {fhex(1 / 512)}, {v(ST)}')
        op(f'v_mov_b32 {v(ST + 1)}, {v(ST)}')
        op(f'v_mov_b32 {v(vMU)}, 0')
        op(f'v_mov_b32 {v(vMU + 2)}, 0')
        op(f'v_permlane32_swap_b32 {v(ST)}, {v(ST + 1)}')
        op(f'v_fma_f32 {v(ST + 1)}, -{v(ST)}, {v(ST)}, {v(ST + 1)}')
        op(f'v_cvt_pk_bf16_f32 {v(ST + 2)}, {v(ST)}, 0')
        op(f'v_max_f32 {v(ST + 1)}, 0, {v(ST + 1)}')
        op(f'v_lshlrev_b32 {v(ST + 3)}, 16, {v(ST + 2)}')
        op(f'v_add_f32 {v(ir2)}, {fhex(1e-5)}, {v(ST + 1)}')
        op(f'v_sub_f32 {v(ST + 3)}, {v(ST)}, {v(ST + 3)}')
        op(f'v_rsq_f32 {v(c)}, {v(ir2)}')
        op(f'v_cvt_pk_bf16_f32 {v(ST + 3)}, {v(ST)}, {v(ST + 3)}')
        op(f'v_mul_f32 {v(c)}, {fhex(-LOG2E)}, {v(c)}')

        def fin():
            I('s_mov_b32 exec_hi, 0')
            I(f'v_mov_b32 {v(vMU)}, {v(ST + 3)}')
            I(f'v_mov_b32 {v(vMU + 1)}, {v(ST + 2)}')
            I(f'v_mov_b32 {v(vMU + 2)}, {v(ST + 3)}')
            I(f'v_mov_b32 {v(vMU + 3)}, {v(ST + 2)}')
            I('s_mov_b32 exec_hi, -1')
        L.append(fin)
        return L

    def h_soffs(self, layer, sig, e):
        I = self.I
        self.s_tb_g1(sT0, sig)
        I(f's_mul_i32 {s(sT0)}, {s(sT0)}, 112')
        I(f's_lshr_b32 {s(sT1)}, {s(sJ)}, 1')
        I(f's_mul_i32 {s(sT1)}, {s(sT1)}, 7')
        I(f's_add_u32 {s(sT0)}, {s(sT0)}, {s(sT1)}')
        I(f's_lshl_b32 {s(sT0)}, {s(sT0)}, 10')
        for b in range(4):
            I(f's_add_u32 {s(sH0 + b)}, {s(sT0)}, {hex(HF[layer] + 1024 * (3 * e + ((b + e) & 3)))}')

    def epi_fill(self, sig, acc, nb):
        I = self.I
        c, ir2 = vCI[sig], vCI[sig] + 1
        n = 8 * nb
        G = lambda k: acc + 16 * (k >> 3) + (k & 7)
        U = lambda k: G(k) + 8
        L = []
        self.epi_tok = []

        def op(t, cost=1, store=False):
            def f():
                tk = I(t)
                if store:
                    self.epi_tok.append(tk)
                    self.epi_nm = self.nm
            L.append((f, cost))
        for t in range(n + 12):
            if t < n:
                op(f'v_mul_f32 {v(U(t))}, {v(G(t))}, {v(U(t))}')
                op(f'v_mul_f32 {v(G(t))}, {v(c)}, {v(G(t))}')
            if 0 <= t - 1 < n:
                op(f'v_exp_f32 {v(G(t - 1))}, {v(G(t - 1))}', 2)
            if 0 <= t - 2 < n:
                op(f'v_fma_f32 {v(G(t - 2))}, {v(G(t - 2))}, {v(ir2)}, {v(ir2)}')
            if 0 <= t - 3 < n:
                op(f'v_rcp_f32 {v(G(t - 3))}, {v(G(t - 3))}', 2)
            if 0 <= t - 4 < n:
                op(f'v_mul_f32 {v(U(t - 4))}, {v(U(t - 4))}, {v(G(t - 4))}')
            k = t - 5
            if 0 <= k < n and k % 2 == 1:
                blk = k >> 3
                op(f'v_cvt_pk_bf16_f32 {v(acc + 16 * blk + ((k & 7) >> 1))}, {v(U(k - 1))}, {v(U(k))}')
                if k & 7 == 7:
                    op(f'buffer_store_dwordx4 {v(acc + 16 * blk, 4)}, {v(vL16)}, {s(rWS, 4)}, {s(sH0 + blk)} offen sc1', 1, True)
        return L

    def epi_packed(self, sig, acc, nb):
        I = self.I
        c = vCI[sig]
        for blk in range(nb):
            g = acc + 16 * blk
            u = g + 8
            for i in range(0, 8, 2):
                I(f'v_pk_mul_f32 {v(u + i, 2)}, {v(g + i, 2)}, {v(u + i, 2)}')
                I(f'v_pk_mul_f32 {v(g + i, 2)}, {v(g + i, 2)}, {v(c, 2)} op_sel_hi:[1,0]')
            for i in range(8):
                I(f'v_exp_f32 {v(g + i)}, {v(g + i)}')
            for i in range(0, 8, 2):
                I(f'v_pk_fma_f32 {v(g + i, 2)}, {v(g + i, 2)}, {v(c, 2)}, {v(c, 2)} op_sel:[0,1,1] op_sel_hi:[1,1,1]')
            for i in range(8):
                I(f'v_rcp_f32 {v(g + i)}, {v(g + i)}')
            for i in range(0, 8, 2):
                I(f'v_pk_mul_f32 {v(u + i, 2)}, {v(u + i, 2)}, {v(g + i, 2)}')
            for i in range(0, 8, 2):
                I(f'v_cvt_pk_bf16_f32 {v(g + i // 2)}, {v(u + i)}, {v(u + i + 1)}')
            I(f'buffer_store_dwordx4 {v(g, 4)}, {v(vL16)}, {s(rWS, 4)}, {s(sH0 + blk)} offen sc1')

    def c4_arrive(self, layer, sig):
        I = self.I
        I(f's_lshl_b32 {s(sT0)}, {s(sW)}, 3')
        I(f's_add_u32 {s(sT0)}, {s(sT0)}, {s(sRQ)}')
        I(f's_lshl_b32 {s(sT0)}, {s(sT0)}, 8')
        I(f's_add_u32 {s(sT0)}, {s(sT0)}, {s(sCB)}')
        I(f's_add_u32 {s(sT0)}, {s(sT0)}, {C4(layer) + 1024 * sig}')
        self.arrive(sT0)

    def wd_fill(self):
        A, I = self.A, self.I
        L = []
        tk = {}
        rd = {}
        sOff, sM = sBOFF, sBM0

        def init():
            I(f's_mul_i32 {s(sOff)}, {s(sW)}, {448 * 1024}')
            I(f's_lshl_b32 {s(sM)}, {s(sCG)}, 7')
            I(f's_add_u32 {s(sOff)}, {s(sOff)}, {s(sM)}')
            I(f's_lshl_b32 {s(sM)}, {s(sW)}, 13')
            I(f's_add_u32 {s(sM)}, {s(sM)}, {SCR}')
        L.append((init, 5))

        def dma(st):
            def f0():
                if st >= 4:
                    A.wait(rd[st - 4])
                I(f's_add_u32 m0, {s(sM)}, {2048 * (st & 3)}')
                I(f's_add_u32 {s(sBIDX)}, {s(sOff)}, {8192 - 1024}')
                I(f'buffer_load_dwordx4 {v(vWDG)}, {s(rWD, 4)}, {s(sOff)} offen lds')

            def f1():
                tk[st] = I(f'buffer_load_dwordx4 {v(vWDG)}, {s(rWD, 4)}, {s(sBIDX)} offen offset:1024 lds')
                I(f's_add_u32 {s(sOff)}, {s(sOff)}, 16384')
            return [(f0, 3), (f1, 2)]

        def reads(st):
            out = []
            for cb in range(2):
                for jj in range(2):
                    def f(cb=cb, jj=jj):
                        A.wait(tk[st])
                        rd[st] = I(f'ds_read_b64_tr_b16 {a(8 * st + 4 * cb + 2 * jj, 2)}, {v(vWD0 + cb)} offset:{2048 * (st & 3) + 512 * jj}')
                    out.append((f, 1))
            return out
        for st in range(28 + 3):
            if st < 28:
                L += dma(st)
            if st >= 3:
                L += reads(st - 3)
        return L

    def g1_pass(self, layer, sig, nb, acc, xtok, fill, budget, nxt=None, delay=0):
        A, I = self.A, self.I
        wt = {}

        def wread(st, b):
            for jj in range(2):
                wt[(st, b)] = I(f'ds_read_b64_tr_b16 {a(aWF + 16 * (st & 1) + 4 * b + 2 * jj, 2)}, {v(vWA + b)} offset:{2048 * st + 512 * jj}')
        for b in range(nb):
            wread(0, b)
        credit = 0.0
        nm = 0
        for st in range(33):
            for b in range(nb):
                d = acc + 16 * b
                if st < 32:
                    A.wait(wt[(st, b)], xtok[st] if b == 0 else None)
                    c = v(d, 16) if st else '0'
                    I(f'v_mfma_f32_32x32x16_bf16 {v(d, 16)}, {a(aWF + 16 * (st & 1) + 4 * b, 4)}, {v(vXR + 4 * (st % 16), 4)}, {c}')
                else:
                    off = (0, 2, 6, 8)[b]
                    I(f'v_mfma_f32_32x32x16_bf16 {v(d, 16)}, {v(vCS + off, 4)}, {v(vMU, 4)}, {v(d, 16)}')
                nm += 1
                if st + 1 < 32:
                    wread(st + 1, b)
                if b == nb - 1 and st < 32:
                    if st + 16 < 32:
                        xtok[st + 16] = self.x_load(sig, st + 16)
                    elif nxt:
                        nxt(st)
                    credit -= 1
                self.nm = nm
                if nm > delay:
                    credit += budget
                while True:
                    k = next((i for i, f in enumerate(fill) if len(f) < 4 or f[3]()), None)
                    if k is None or credit < fill[k][1]:
                        break
                    f = fill.pop(k)
                    f[0]()
                    credit -= f[1]
                if st == 31 and b == nb - 1:
                    while any(f[2] for f in fill):
                        k = next(i for i, f in enumerate(fill) if len(f) < 4 or f[3]() or f[2])
                        fill.pop(k)[0]()
                credit = min(credit, budget + 4)

    def g2_addr(self, layer, sig):
        I = self.I
        self.s_tb_fin(sT0, sig)
        I(f's_mul_i32 {s(sT0)}, {s(sT0)}, 112')
        I(f's_mul_i32 {s(sT1)}, {s(sW)}, 28')
        I(f's_add_u32 {s(sT0)}, {s(sT0)}, {s(sT1)}')
        I(f's_lshl_b32 {s(sT0)}, {s(sT0)}, 10')
        I(f's_add_u32 {s(sT0)}, {s(sT0)}, {hex(HF[layer])}')
        I(f'v_add_u32 {v(vXA[sig])}, {s(sT0)}, {v(vL16)}')

    def c4_off(self, dst, layer, sig):
        I = self.I
        I(f's_lshl_b32 {s(dst)}, {s(sRQ)}, 3')
        I(f's_add_u32 {s(dst)}, {s(dst)}, {s(sW)}')
        I(f's_lshl_b32 {s(dst)}, {s(dst)}, 8')
        I(f's_add_u32 {s(dst)}, {s(dst)}, {s(sCB)}')
        I(f's_add_u32 {s(dst)}, {s(dst)}, {C4(layer) + 1024 * sig}')

    def g2_pass(self, layer, sig, htok):
        A, I = self.A, self.I
        acc = vACC1
        for st in range(28):
            A.wait(htok[st])
            for cb in range(2):
                d = acc + 16 * cb
                c = v(d, 16) if st else '0'
                I(f'v_mfma_f32_32x32x16_bf16 {v(d, 16)}, {a(8 * st + 4 * cb, 4)}, {v(vXR + 4 * (st % 16), 4)}, {c}')
            if st + 16 < 28:
                htok[st + 16] = self.x_load(sig, st + 16)
        T = vT
        self.barrier()
        for cb in range(2):
            for g in range(4):
                k = 8 * cb + 2 * g
                r = T + (g & 1)
                if k:
                    I(f'v_xor_b32 {v(r)}, {16 * k}, {v(vRW)}')
                I(f'ds_write_b128 {v(r) if k else v(vRW)}, {v(acc + 16 * cb + 4 * g, 4)}')
        A.wait_lg0()
        self.barrier()
        R = acc + 32
        tr = []
        for p in range(4):
            tr.append(I(f'ds_read_b128 {v(R + 8 * p, 4)}, {v(vRR0)} offset:{8192 * p}'))
            tr.append(I(f'ds_read_b128 {v(R + 8 * p + 4, 4)}, {v(vRR1)} offset:{8192 * p}'))
        X = T + 2
        self.unpack8(X, vXRES[sig])
        for p in range(4):
            A.wait(tr[2 * p + 1])
            for i in range(0, 8, 2):
                I(f'v_pk_add_f32 {v(X + i, 2)}, {v(X + i, 2)}, {v(R + 8 * p + i, 2)}')
        for i in range(4):
            I(f'v_cvt_pk_bf16_f32 {v(vXRES[sig] + i)}, {v(X + 2 * i)}, {v(X + 2 * i + 1)}')
        if layer == 0:
            rS = vCI[sig]
            self.stats4(rS, rS + 1, vXRES[sig])
            self.reduce_uu(rS, rS + 1, T)
            self.s2_off(sT0, sig)
            I(f's_lshl_b32 {s(sT1)}, {s(sCG)}, 6')
            I(f's_add_u32 {s(sT0)}, {s(sT0)}, {s(sT1)}')
            I('s_mov_b64 exec, 0xff')
            I(f'buffer_store_dwordx2 {v(rS, 2)}, {v(vL8)}, {s(rWS, 4)}, {s(sT0)} offen sc1')
            I('s_mov_b64 exec, -1')
        else:
            self.s_tb_fin(sT0, sig)
            I(f's_lshl_b32 {s(sT0)}, {s(sT0)}, 2')
            I(f's_add_u32 {s(sT0)}, {s(sT0)}, {s(sW)}')
            I(f's_lshl_b32 {s(sT0)}, {s(sT0)}, 13')
            I(f's_lshl_b32 {s(sT1)}, {s(sCG)}, 7')
            I(f's_add_u32 {s(sT0)}, {s(sT0)}, {s(sT1)}')
            I(f'buffer_store_dwordx4 {v(vXRES[sig], 4)}, {v(vFROW)}, {s(rOUT, 4)}, {s(sT0)} offen')

    def x_phase(self, sig):
        A, I = self.A, self.I
        rS = vCI[sig]
        self.s2_off(sT0, sig)
        L, Ld = A.newlabel('s2'), A.newlabel('s2d')
        I(f's_mov_b32 {s(sSPIN)}, 0')
        I(f's_mov_b32 {s(sT1)}, {hex(SENT)}')
        A.label(L)
        I(f'buffer_load_dwordx2 {v(rS, 2)}, {v(vL8)}, {s(rWS, 4)}, {s(sT0)} offen sc1')
        A.wait_vm0()
        I(f'v_cmp_eq_u32 vcc, {s(sT1)}, {v(rS + 1)}')
        I('s_nop 1')
        I(f's_cbranch_vccz {Ld}')
        I(f's_add_u32 {s(sSPIN)}, {s(sSPIN)}, 1')
        I(f's_cmp_lt_u32 {s(sSPIN)}, {hex(self.o["spinmax"])}')
        I(f's_cbranch_scc1 {L}')
        I('s_branch L_end')
        A.label(Ld)
        self.reduce_uu(rS, rS + 1, vT)
        self.xstep(sig, rS, rS + 1, 1)
        A.wait_vm0()
        self.barrier()
        Ln = A.newlabel('noarr')
        I(f's_cmp_lg_u32 {s(sW)}, {sig}')
        I(f's_cbranch_scc1 {Ln}')
        I(f's_lshl_b32 {s(sT0)}, {s(sRQ)}, 9')
        I(f's_add_u32 {s(sT0)}, {s(sT0)}, {s(sCB)}')
        I(f's_add_u32 {s(sT0)}, {s(sT0)}, {C3(1) + 256 * sig}')
        vm = A.vm
        self.arrive(sT0)
        A.vm = vm
        A.label(Ln)

    def ffn(self, e):
        A, I = self.A, self.I
        nbs = (4, 3) if e == 0 else (3, 4)
        accs = (vACC1, vACC2) if e == 0 else (vACC2, vACC1)
        STa, STb, FL = vT, vT + 8, vT + 16
        for layer in range(2):
            self.c3_off(sT2, layer, 0)
            self.poll(sT2, 8)
            self.stamp(f'c3a_{layer}')
            self.x_addr(layer, 0)
            ts = self.xs_loads(STa)
            xa = {st: self.x_load(0, st) for st in range(16)}
            fill = [(f, 1, True) for f in self.stats_fill(0, STa, ts)]
            wd = self.wd_fill() if layer == 0 else []
            nwa = self.o.get('wd_a', 150)
            fill += [(f, c, False) for f, c in wd[:nwa]]
            wd = wd[nwa:]
            xb = {}
            st8 = {}

            def nxt(st, layer=layer, xb=xb, st8=st8):
                if st == 16:
                    self.check_or_poll(st8['flag'], FL, sT3, 8)
                    self.x_addr(layer, 1)
                    st8['ts'] = self.xs_loads(STb)
                xb[st - 16] = self.x_load(1, st - 16)

            def flagld(layer=layer, st8=st8):
                self.c3_off(sT3, layer, 1)
                st8['flag'] = I(f'buffer_load_dword {v(FL)}, off, {s(rWS, 4)}, {s(sT3)} sc1')
            orig_load = self.x_load

            def x_load_hook(sig, st, flagld=flagld):
                t = orig_load(sig, st)
                if sig == 0 and st == 28:
                    flagld()
                return t
            self.x_load = x_load_hook
            self.g1_pass(layer, 0, nbs[0], accs[0], xa, fill, self.o.get('ba', 2.7), nxt, delay=2)
            self.x_load = orig_load
            self.stamp(f'g1a_{layer}')
            self.h_soffs(layer, 0, e)
            epi = [(f, c, False) for f, c in self.epi_fill(0, accs[0], nbs[0])]

            def arr(layer=layer):
                A.wait(self.epi_tok)
                self.c4_arrive(layer, 0)
            stf = [(f, 1, True) for f in self.stats_fill(1, STb, st8['ts'])]
            rest = fill + [(f, c, False) for f, c in wd]
            nst = nbs[0]
            rdy = lambda nst=nst: len(self.epi_tok) == nst and self.nm >= self.epi_nm + self.o.get('arrlag', 20)
            fill = epi + [(arr, 6, False, rdy)] + stf + rest
            self.g1_pass(layer, 1, nbs[1], accs[1], xb, fill, self.o.get('bb', 2.7), None, delay=3)
            while fill:
                fill.pop(0)[0]()
            self.stamp(f'g1b_{layer}')
            self.c4_off(sT2, layer, 0)
            self.g2_addr(layer, 0)
            self.poll(sT2, 8)
            ha = {st: self.x_load(0, st) for st in range(self.o.get('hpre', 8))}
            self.h_soffs(layer, 1, e)
            self.epi_packed(1, accs[1], nbs[1])
            A.wait_vm0()
            self.c4_arrive(layer, 1)
            for st in range(self.o.get('hpre', 8), 16):
                ha[st] = self.x_load(0, st)
            A.wait_lg0()
            self.stamp(f'epib_{layer}')
            self.g2_pass(layer, 0, ha)
            self.stamp(f'g2a_{layer}')
            self.c4_off(sT2, layer, 1)
            self.g2_addr(layer, 1)
            self.poll(sT2, 8)
            self.stamp(f'c4b_{layer}')
            hb = {st: self.x_load(1, st) for st in range(16)}
            self.g2_pass(layer, 1, hb)
            self.stamp(f'g2b_{layer}')
            if layer == 0:
                self.x_phase(0)
                self.stamp('xa')
                self.x_phase(1)
                self.stamp('xb')

    def build(self):
        A, I = self.A, self.I
        self.prologue()
        self.p0()
        if self.stop != 'p0':
            self.conv()
        if self.stop not in ('p0', 'conv'):
            self.ffn_setup()
            I(f's_cmp_eq_u32 {s(sE)}, 1')
            I('s_cbranch_scc0 L_even')
            I('s_branch L_odd')
            A.label('L_even')
            st = A.state()
            self.ffn(0)
            I('s_branch L_end')
            A.restore(st)
            A.label('L_odd')
            self.ffn(1)
        A.label('L_end')
        if self.prof:
            self.stamp('end')
            I(f's_lshl_b32 {s(sT0)}, s2, 2')
            I(f's_add_u32 {s(sT0)}, {s(sT0)}, {s(sW)}')
            I(f's_lshl_b32 {s(sT0)}, {s(sT0)}, 8')
            I(f's_add_u32 {s(sT0)}, {s(sT0)}, {hex(PROF)}')
            I('s_mov_b64 exec, -1')
            I(f'v_lshlrev_b32 {v(vT)}, 2, {v(vLANE)}')
            I(f'buffer_store_dword {v(vPROF)}, {v(vT)}, {s(rWS, 4)}, {s(sT0)} offen')
        A.label('L_exit')
        I('s_endpgm')
        A.label('L_codeend')
        hdr = open(os.path.join(os.path.dirname(os.path.abspath(__file__)), '..', 'cdna_kernels', NAME + '.s.ref')).read().split('\n')
        head = []
        for l in hdr:
            if l.startswith('; @launch'):
                head.append('; @launch grid=(256,1,1) block=(256,1,1) lds=163840')
                break
            head.append(l)
        txt = '\n'.join(head) + '\n'
        txt += f'''.amdgcn_target "amdgcn-amd-amdhsa--gfx950"
.text
.globl {NAME}_kernel
.p2align 8
.type {NAME}_kernel,@function
{NAME}_kernel:
'''
        body = A.text()
        txt += body
        if self.o.get('codepf', 1):
            txt += '.set CODE_LEN, L_codeend-L_pfbase\n.set CODE_SHARE, ((CODE_LEN>>5)+127)&0xffffff80\n'
        txt += f'''.section .rodata,"a"
.p2align 6
.amdhsa_kernel {NAME}_kernel
  .amdhsa_next_free_vgpr 512
  .amdhsa_next_free_sgpr 102
  .amdhsa_accum_offset 256
  .amdhsa_group_segment_fixed_size 0
  .amdhsa_kernarg_size 104
  .amdhsa_user_sgpr_count 2
  .amdhsa_user_sgpr_kernarg_segment_ptr 1
  .amdhsa_system_sgpr_workgroup_id_x 1
  .amdhsa_float_denorm_mode_32 3
.end_amdhsa_kernel
'''
        return txt


if __name__ == '__main__':
    import argparse, json
    ap = argparse.ArgumentParser()
    ap.add_argument('-o', default=os.path.join(os.path.dirname(os.path.abspath(__file__)), '..', 'cdna_kernels', NAME + '.s'))
    ap.add_argument('--prof', action='store_true')
    ap.add_argument('--stop')
    ap.add_argument('--opts', default='{}')
    args = ap.parse_args()
    g = Gen(prof=args.prof, stop=args.stop, opts=json.loads(args.opts))
    t = g.build()
    open(args.o, 'w').write(t)
    if args.prof:
        open(args.o + '.stamps', 'w').write(json.dumps(g.stamps))
    print('instructions', g.A.ninst, 'nops', g.A.nnop, 'bytes of text', len(t))
```
